```python
import torch

def _softmax(x, axis=-1):
    return torch.softmax(x, dim=axis)

def _gelu(x):
    return torch.nn.functional.gelu(x, approximate='tanh')

def _silu(x):
    return torch.nn.functional.silu(x)

def _sigmoid(x):
    return torch.sigmoid(x)

def _layernorm(x, axis=-1, eps=1e-05):
    m = x.mean(dim=axis, keepdim=True)
    v = x.var(dim=axis, keepdim=True, unbiased=False)
    return (x - m) / torch.sqrt(v + eps)

def _scatter_add(tgt, idx, src, axis=0):
    return tgt.clone().index_add_(axis, idx, src)

def _segment_sum(src, seg, n):
    out = torch.zeros((n,) + src.shape[1:], dtype=src.dtype)
    return out.index_add_(0, seg, src)

def _pad(x, pw):
    flat = tuple((v for pair in reversed(pw) for v in pair))
    return torch.nn.functional.pad(x, flat)
kernel_name = 'recurrent_scan__sliding_local_dilated__mixer_gmlp__prompt'

def setup_inputs():

    _w = lambda a: (lambda t: t.to(torch.bfloat16) if t.is_floating_point() else t)(torch.as_tensor(a))

    def _A_setup():
        B, S, D = (1, 2048, 512)
        return {'x': _w((lambda *s: torch.randn(*s, dtype=torch.bfloat16) * 0.05)(B, S, D)), 'wqkv': _w((lambda *s: torch.randn(*s, dtype=torch.bfloat16) * 0.05)(D, 3 * D)), 'wo': _w((lambda *s: torch.randn(*s, dtype=torch.bfloat16) * 0.05)(D, D))}
    _A_in = _A_setup()

    def _B_setup():
        B, S, D, F = (1, 2048, 512, 1792)
        Fh = F // 2
        return {'x': _w((lambda *s: torch.randn(*s, dtype=torch.bfloat16) * 0.05)(B, S, D)), 'w_in': _w((lambda *s: torch.randn(*s, dtype=torch.bfloat16) * 0.4)(D, 2 * Fh)), 'w_sp': _w(0.01 * (lambda *s: torch.randn(*s, dtype=torch.bfloat16) * 0.4)(S, S)), 'b_sp': _w(1.0 + 0.01 * (lambda *s: torch.randn(*s, dtype=torch.bfloat16) * 0.05)(S)), 'w_out': _w((lambda *s: torch.randn(*s, dtype=torch.bfloat16) * 0.05)(Fh, D))}
    _B_in = _B_setup()
    return {'A_x': _A_in['x'], 'A_wqkv': _A_in['wqkv'], 'A_wo': _A_in['wo'], 'B_x': _B_in['x'], 'B_w_in': _B_in['w_in'], 'B_w_sp': _B_in['w_sp'], 'B_b_sp': _B_in['b_sp'], 'B_w_out': _B_in['w_out']}

def reference(A_x, A_wqkv, A_wo, B_x, B_w_in, B_w_sp, B_b_sp, B_w_out):

    def _A_ref(x, wqkv, wo):
        B, S, D = x.shape
        H = 32
        Dh = D // H
        W, dil = (8, 2)
        qkv = (lambda x, *d: x.permute(*d))((x @ wqkv).reshape(B, S, 3, H, Dh), 2, 0, 3, 1, 4)
        q, k, v = (qkv[0], qkv[1], qkv[2])
        scale = Dh ** (-0.5)
        pos = torch.arange(S)
        off = torch.arange(W) * dil
        idx = pos[:, None] - off[None, :]
        mask = idx >= 0
        idx_c = torch.where(mask, idx, 0).reshape(-1)
        kg = k[:, :, idx_c, :].reshape(B, H, S, W, Dh)
        vg = v[:, :, idx_c, :].reshape(B, H, S, W, Dh)
        logits = torch.einsum('bhsd,bhswd->bhsw', q, kg) * scale
        logits = torch.where(mask[None, None, :, :], logits, -1000000000.0)
        attn = _softmax(logits, axis=-1)
        o = torch.einsum('bhsw,bhswd->bhsd', attn, vg)
        return (lambda x, *d: x.permute(*d))(o, 0, 2, 1, 3).reshape(B, S, D) @ wo

    def _B_ref(x, w_in, w_sp, b_sp, w_out):
        B, S, D = x.shape
        F = w_in.shape[-1]
        Fh = F // 2
        z = _gelu(torch.einsum('bsd,df->bsf', x, w_in))
        z1 = z[..., :Fh].clone()
        z2 = _layernorm(z[..., Fh:], axis=-1)
        g = torch.einsum('ts,bsf->btf', w_sp, z2) + b_sp[None, :, None]
        return torch.einsum('bsf,fd->bsd', z1 * g, w_out)
    x = A_x
    xn = _layernorm(x, axis=-1)
    s = _A_ref(xn, A_wqkv, A_wo)
    g = _silu(_B_ref(xn, B_w_in, B_w_sp, B_b_sp, B_w_out))
    return x + s * g
```

```python
import re

TRANS = ("v_exp_f32", "v_log_f32", "v_rcp_f32", "v_rsq_f32", "v_sqrt_f32", "v_sin_f32", "v_cos_f32")

def regs_of(tok):
    tok = tok.strip()
    tok = tok.lstrip("-")
    m = re.fullmatch(r"abs\((.*)\)|\|(.*)\|", tok)
    if m:
        tok = m.group(1) or m.group(2)
    m = re.fullmatch(r"([vsa])(\d+)", tok)
    if m:
        return {(m.group(1), int(m.group(2)))}
    m = re.fullmatch(r"([vsa])\[(\d+):(\d+)\]", tok)
    if m:
        return {(m.group(1), i) for i in range(int(m.group(2)), int(m.group(3)) + 1)}
    if tok in ("vcc", "exec", "m0", "scc"):
        return {("x", tok)}
    if tok in ("vcc_lo", "vcc_hi"):
        return {("x", "vcc")}
    if tok in ("exec_lo", "exec_hi"):
        return {("x", "exec")}
    return set()

class Ins:
    def __init__(self, text):
        self.text = text
        t = text.split(";")[0].strip()
        self.label = t.endswith(":")
        self.directive = t.startswith(".") or t == ""
        self.op = ""
        self.dst = set(); self.src = set()
        self.A = set(); self.B = set(); self.C = set(); self.data = set()
        self.kind = "none"
        self.states = 0
        if self.label or self.directive:
            return
        parts = t.split(None, 1)
        op = self.op = parts[0]
        rest = parts[1] if len(parts) > 1 else ""
        ops = []
        depth = 0; cur = ""
        for ch in rest:
            if ch in "[(": depth += 1
            if ch in "])": depth -= 1
            if ch == "," and depth == 0:
                ops.append(cur); cur = ""
            else:
                cur += ch
        ops.append(cur)
        ops = [o.strip() for o in ops]
        mods = ""
        if ops:
            last = ops[-1].split(None, 1)
            if len(last) > 1:
                ops[-1] = last[0]; mods = last[1]
        self.mods = mods
        R = [regs_of(o) for o in ops]
        self.states = 1
        self.dpp = ("_dpp" in op) or any(k in mods for k in ("row_ror", "row_shr", "quad_perm", "row_mirror", "row_half_mirror", "row_bcast", "row_shl"))
        if op == "s_nop":
            self.kind = "nop"; self.states = int(ops[0], 0) + 1
        elif op.startswith("v_mfma"):
            self.kind = "mfma"
            self.dst = R[0]; self.A = R[1]; self.B = R[2]; self.C = R[3]
            self.src = R[1] | R[2] | R[3]
            self.passes = 8 if "32x32" in op else 4
        elif op.startswith("v_"):
            self.kind = "valu"
            self.dst = set(R[0]); self.src = set().union(*R[1:]) if len(R) > 1 else set()
            if op.startswith(("v_fmac", "v_dot2c", "v_pk_fmac")):
                self.src |= R[0]
            if op.startswith(("v_swap", "v_permlane")):
                self.dst = R[0] | R[1]; self.src = R[0] | R[1]
            if op.startswith(("v_add_co", "v_sub_co", "v_addc_co")):
                self.dst = R[0] | R[1]; self.src = set().union(*R[2:])
            if op.startswith("v_cndmask") and len(ops) == 3:
                self.src |= {("x", "vcc")}
            if self.dpp:
                self.src |= R[0]
        elif op.startswith("ds_"):
            self.kind = "ds"
            if op.startswith(("ds_read", "ds_bpermute", "ds_permute", "ds_swizzle")):
                self.dst = R[0]; self.src = set().union(*R[1:])
            else:
                self.src = set().union(*R)
        elif op.startswith(("buffer_", "global_")):
            self.kind = "vmem"
            self.lds = bool(re.search(r"\blds\b", mods)) or "load_lds" in op
            if "load" in op and not self.lds:
                self.dst = R[0]; self.src = set().union(*R[1:])
            else:
                self.src = set().union(*R) if R else set()
                if "store" in op and ("x4" in op or "x3" in op):
                    self.data = R[0] if op.startswith("buffer_") else R[1]
            if self.lds:
                self.src |= {("x", "m0")}
        elif op.startswith("s_"):
            self.kind = "salu"
            if op.startswith(("s_cmp", "s_cbranch", "s_branch", "s_waitcnt", "s_barrier", "s_sleep", "s_setprio", "s_endpgm")):
                self.src = set().union(*R) if R else set()
            else:
                self.dst = set(R[0]) if R else set()
                self.src = set().union(*R[1:]) if len(R) > 1 else set()
                if "saveexec" in op:
                    self.dst |= {("x", "exec")}
        else:
            raise ValueError("unknown instruction: " + text)

def vset(s): return {r for r in s if r[0] in "va"}
def sset(s): return {r for r in s if r[0] == "s" or r == ("x", "vcc")}

def need_states(p, c):
    n = 0
    if p.kind == "valu":
        pv = vset(p.dst); ps = sset(p.dst)
        isdot = p.op.startswith("v_dot2")
        if c.kind == "mfma" and pv & c.src: n = max(n, 3 if isdot else 2)
        if c.kind == "valu":
            if c.op.startswith(("v_readfirstlane", "v_readlane")) and pv & c.src: n = max(n, 1)
            if c.dpp and pv & c.src: n = max(n, 2)
            if c.op.startswith("v_permlane") and pv & c.src: n = max(n, 2)
            if ps & c.src: n = max(n, 4 if c.op.startswith(("v_readlane", "v_writelane")) else 2)
        if p.op.split("_e32")[0] in TRANS and c.kind in ("valu", "mfma", "vmem", "ds") and pv & c.src: n = max(n, 1)
        if "sdwa" in p.op and c.kind == "valu" and pv & (c.src | c.dst): n = max(n, 1)
        if isdot and c.kind in ("valu", "vmem", "ds") and pv & (c.src | c.dst):
            if not (c.op == p.op and pv == vset(c.dst)): n = max(n, 3)
        if c.kind == "vmem" and ps & c.src: n = max(n, 5)
        if c.kind == "salu" and ps & c.src and not c.op.startswith("s_cbranch"): n = max(n, 1)
    if p.kind == "mfma":
        ps = p.passes
        big = {4: 8, 8: 12}[ps]; ovl = {4: 6, 8: 10}[ps]; war = {4: 3, 8: 7}[ps]
        if c.kind == "mfma":
            if p.dst & (c.A | c.B): n = max(n, big)
            if p.dst & c.C and not (p.dst == c.C and c.passes == ps): n = max(n, ovl)
            if p.dst & c.dst and not (p.dst == c.C): n = max(n, ovl)
        if c.kind in ("valu", "vmem", "ds") and p.dst & (c.src | c.dst): n = max(n, big)
        if c.kind == "valu" and p.C & c.dst: n = max(n, war)
    if p.kind == "vmem" and p.data:
        if c.kind == "valu" and p.data & c.dst: n = max(n, 2)
        elif p.data & c.dst: n = max(n, 1)
    if p.kind == "salu" and ("x", "m0") in p.dst and c.kind == "vmem" and c.lds: n = max(n, 1)
    return n

class Asm:
    def __init__(self):
        self.L = []
        self.vm = []
        self.lg = []
        self.uid = 0
    def __call__(self, text):
        for line in text.split("\n"):
            if line.strip():
                self.L.append(line.strip())
    def lab(self, base):
        self.uid += 1
        return f"L_{base}_{self.uid}"
    def vmem(self, text, tag):
        self(text); self.vm.append(tag)
        assert len(self.vm) <= 63, ("too many vmem outstanding", len(self.vm))
    def vmem_extra(self, text):
        self(text)
    def wait_vm(self, *tags):
        idx = [i for i, t in enumerate(self.vm) if t in tags]
        if not idx:
            return
        n = len(self.vm) - 1 - max(idx)
        self(f"s_waitcnt vmcnt({n})")
        self.vm = self.vm[max(idx) + 1:]
    def wait_vm_all(self):
        self("s_waitcnt vmcnt(0)"); self.vm = []
    def ds(self, text, tag="ds"):
        self(text); self.lg.append(tag)
    def wait_lg(self, *tags):
        idx = [i for i, t in enumerate(self.lg) if t in tags]
        if not idx:
            return
        n = len(self.lg) - 1 - max(idx)
        n = min(n, 15)
        self(f"s_waitcnt lgkmcnt({n})")
        self.lg = self.lg[len(self.lg) - n:] if n else []
    def wait_lg_all(self):
        self("s_waitcnt lgkmcnt(0)"); self.lg = []
    def finish(self):
        out = []
        win = []
        nnop = 0
        for text in self.L:
            c = Ins(text)
            if c.label or c.directive:
                out.append(text); continue
            dist = 0; need = 0
            for p in reversed(win):
                r = need_states(p, c)
                if r - dist > need: need = r - dist
                dist += p.states
                if dist >= 20: break
            while need > 0:
                k = min(need, 16)
                nop = Ins(f"s_nop {k-1}")
                out.append(" " + nop.text); win.append(nop); need -= k; nnop += 1
            out.append(" " + text); win.append(c)
            if len(win) > 40: win = win[-30:]
        self.nnop = nnop
        return "\n".join(out) + "\n"

def vr(a, n=1):
    return f"v{a}" if n == 1 else f"v[{a}:{a+n-1}]"
def sr(a, n=1):
    return f"s{a}" if n == 1 else f"s[{a}:{a+n-1}]"
```

```python
import sys, struct
from asmlib import *

NAME = "recurrent_scan__sliding_local_dilated__mixer_gmlp__prompt"
KN = NAME + "_kernel"

class Cfg:
    ts = False
    mapmode = 2
    spin_limit = 200000
    npre = 6
    f3stage = 18
cfg = Cfg()

def f32(x): return "0x%08x" % struct.unpack("<I", struct.pack("<f", x))[0]

WS_Z2N = 0; WS_O = 0x400000; WS_S = 0x600000; WS_H = 0x800000; WS_STATS = 0xC00000
WS_F2 = 0xC40000; WS_F3 = 0xC42000; WS_F4 = 0xC44000; WS_TS = 0xD00000; WS_SIZE = 0x10000000
SLOT = 32768
AUX = 131072; HALO = AUX; KVX = AUX + 16384; STAT = KVX + 8192; COEF = STAT + 2048; AB = COEF + 4096
LDS_TOTAL = 163840
assert AB + 2048 == LDS_TOTAL
SX, SWQ, SWO, SWI, SWS, SBS, SWT, SOUT, SDBG, SW = 8, 12, 16, 20, 24, 28, 32, 36, 40, 44
sM, sJ, sWv, sRH, sCG, sNON, sPB = 48, 49, 50, 51, 52, 53, 54
sZ2, sZ1, sQK, sSP, sWT, sT0, sT1, sT2, sT3 = 55, 56, 57, 58, 59, 60, 61, 62, 63
sGC = 64
sONE = 66; sMSK = 67; sZB = 68; sWOb = 69; sCNT = 70; sLP = 71; sC2 = 72
sTS = 86
def srd(b): return f"s[{b}:{b+3}]"
vLANE, vL16, vWI, vWQ, vWS, vWT, vBIAS = 1, 2, 3, 4, 5, 6, 7
vA0 = 8
vP = 12
Z2R = 16; Z1R = 32; FB = 48; ACC = 96; XR = 128
def X(p, ks): return XR + (p * 16 + ks) * 4

class Gen:
    def __init__(self):
        self.a = Asm()
        self.nts = 0
        self.hi = False

    def stamp(self, name):
        if not cfg.ts: return
        a = self.a
        assert self.nts < 16
        a.wait_lg_all()
        a(f"s_memrealtime s[74:75]\ns_waitcnt lgkmcnt(0)\ns_mov_b32 s{sTS+self.nts}, s74")
        self.names.append(name)
        self.nts += 1

    def dma(self, srdb, voff, sbase, goff, lds, tag):
        a = self.a
        a(f"s_add_u32 m0, s{sPB}, {lds}")
        a(f"s_add_u32 s{sT0}, s{sbase}, {goff}")
        a.vmem(f"buffer_load_dwordx4 v{voff}, {srd(srdb)}, s{sT0} offen lds", tag)

    def slot(self, s): return ((s + 2) % 4) * SLOT

    def issue_stage(self, s):
        if s >= len(self.stages): return
        kind, i = self.stages[s]
        base = self.slot(s); tag = ("st", s)
        if kind in ("z2", "z1"):
            for q in range(4):
                self.dma(SWI, vWI, sZ2 if kind == "z2" else sZ1, (4 * i + q) * 32 * 3584, base + q * 8192, tag)
        elif kind == "qkv":
            for pn in range(3):
                self.dma(SWQ, vWQ, sQK, i * 64 * 3072 + pn * 1024, base + pn * 8192, tag)
        elif kind == "wsp":
            for q in range(4):
                self.dma(SWS, vWS, sSP, (4 * i + q) * 128, base + q * 8192, tag)
        elif kind == "wout":
            for q in range(4 if i < 3 else 2):
                self.dma(SWT, vWT, sWT, (i * 256 + q * 64) * 1024, base + q * 8192, tag)
        elif kind == "wo":
            pp, ii = divmod(i, 4)
            for q in range(4):
                self.dma(SWO, vWT, sWOb, (4 * ii + q) * 32 * 1024 + pp * 256, base + q * 8192, tag)

    def begin_stage(self, s, extra=()):
        a = self.a
        a.wait_vm(("st", s))
        a.wait_lg_all()
        a("s_barrier")
        for e in extra: self.issue_stage(e)
        self.issue_stage(s + 3)

    def fix_hi(self, s, nregs):
        want = self.slot(s) >= 65536
        if want != self.hi:
            for k in range(nregs):
                self.a(f"v_xor_b32 v{vA0+k}, 0x10000, v{vA0+k}")
            self.hi = want
        return self.slot(s) & 0xFFFF

    def poll_check(self, load_text, vreg, tag, second=None):
        a = self.a
        ok = a.lab("ok"); lp = a.lab("spin")
        def cmp():
            a(f"v_cmp_ne_u32 vcc, s{sNON}, v{vreg}")
            if second is not None:
                a(f"v_cmp_ne_u32 s[76:77], s{sNON}, v{second}\ns_nop 1\ns_or_b64 vcc, vcc, s[76:77]")
        a.wait_vm(tag)
        cmp()
        a(f"s_cbranch_vccz {ok}")
        a(f"s_mov_b32 s{sCNT}, {cfg.spin_limit}")
        a(f"{lp}:")
        a("s_sleep 2")
        a(load_text)
        a("s_waitcnt vmcnt(0)")
        a(f"s_sub_u32 s{sCNT}, s{sCNT}, 1")
        a(f"s_cbranch_scc1 {ok}")
        cmp()
        a(f"s_cbranch_vccnz {lp}")
        a(f"{ok}:")

    def get_nonce(self):
        a = self.a
        ok = a.lab("nok"); lp = a.lab("nspin")
        a.wait_vm("non")
        a(f"v_cmp_eq_u32 vcc, 0, v{vP+1}")
        a(f"s_cbranch_vccz {ok}")
        a(f"s_mov_b32 s{sCNT}, {cfg.spin_limit}")
        a(f"{lp}:")
        a("s_sleep 2")
        a(f"buffer_load_dwordx2 v[{vP}:{vP+1}], off, {srd(SDBG)}, 0 sc1")
        a("s_waitcnt vmcnt(0)")
        a(f"s_sub_u32 s{sCNT}, s{sCNT}, 1")
        a(f"s_cbranch_scc1 {ok}")
        a(f"v_cmp_eq_u32 vcc, 0, v{vP+1}")
        a(f"s_cbranch_vccnz {lp}")
        a(f"{ok}:")
        a(f"v_readfirstlane_b32 s{sNON}, v{vP}")

    def issue_nonce(self):
        self.a.vmem(f"buffer_load_dwordx2 v[{vP}:{vP+1}], off, {srd(SDBG)}, 0 sc1", "non")

    def flag_store(self, base, expr_lines):
        a = self.a
        a(expr_lines)
        a(f"s_add_u32 s{sT1}, s{sT1}, {base}")
        a(f"v_mov_b32 v0, s{sNON}")
        a("s_mov_b64 exec, 1")
        a.vmem(f"buffer_store_dword v0, off, {srd(SW)}, s{sT1} sc1", "flag")
        a("s_mov_b64 exec, -1")

    def prologue(self):
        a = self.a
        a(f"""
        s_cmp_ge_u32 s2, 256
        s_cbranch_scc1 L_exit
        s_load_dwordx16 s[64:79], s[0:1], 0
        s_load_dwordx4 s[80:83], s[0:1], 64
        s_load_dwordx2 s[84:85], s[0:1], 80
        """)
        if cfg.ts:
            a(f"s_memrealtime s[{sTS}:{sTS+1}]")
            self.nts = 1; self.names = ["start"]
        a(f"""
        v_lshrrev_b32 v2, 6, v0
        v_and_b32 v{vLANE}, 63, v0
        v_readfirstlane_b32 s{sWv}, v2
        s_and_b32 s{sT0}, s2, 7
        s_lshr_b32 s{sT1}, s2, 3
        """)
        if cfg.mapmode == 2:
            a(f"""
            s_lshr_b32 s{sM}, s{sT0}, 1
            s_lshl_b32 s{sM}, s{sM}, 3
            s_lshr_b32 s{sT2}, s{sT1}, 2
            s_add_u32 s{sM}, s{sM}, s{sT2}
            s_and_b32 s{sJ}, s{sT0}, 1
            s_lshl_b32 s{sJ}, s{sJ}, 2
            s_and_b32 s{sT2}, s{sT1}, 3
            s_add_u32 s{sJ}, s{sJ}, s{sT2}
            """)
        else:
            a(f"""
            s_lshl_b32 s{sM}, s{sT0}, 2
            s_lshr_b32 s{sT2}, s{sT1}, 3
            s_add_u32 s{sM}, s{sM}, s{sT2}
            s_and_b32 s{sJ}, s{sT1}, 7
            """)
        a(f"""
        s_lshr_b32 s{sRH}, s{sWv}, 2
        s_and_b32 s{sCG}, s{sWv}, 3
        s_lshl_b32 s{sPB}, s{sWv}, 10
        v_lshlrev_b32 v{vL16}, 4, v{vLANE}
        v_lshrrev_b32 v8, 3, v{vLANE}
        v_and_b32 v9, 7, v{vLANE}
        v_lshlrev_b32 v10, 10, v8
        v_lshl_add_u32 v10, v9, 4, v10
        v_lshrrev_b32 v11, 5, v{vLANE}
        v_and_b32 v12, 31, v{vLANE}
        v_lshlrev_b32 v13, 10, v11
        v_lshl_add_u32 v13, v12, 4, v13
        s_lshl_b32 s{sT2}, s{sM}, 6
        s_lshl_b32 s{sT3}, s{sWv}, 3
        s_add_u32 s{sZ2}, s{sT2}, s{sT3}
        s_lshl_b32 s{sZ2}, s{sZ2}, 10
        s_max_u32 s{sZ1}, s{sT2}, 16
        s_sub_u32 s{sZ1}, s{sZ1}, 16
        s_lshl_b32 s{sT3}, s{sWv}, 1
        s_add_u32 s{sZ1}, s{sZ1}, s{sT3}
        s_lshl_b32 s{sZ1}, s{sZ1}, 10
        s_waitcnt lgkmcnt(0)
        """)
        def mk(b, p, size):
            a(f"s_mov_b32 s{b}, s{p}\ns_mov_b32 s{b+1}, s{p+1}\ns_mov_b32 s{b+2}, {size}\ns_mov_b32 s{b+3}, 0x20000")
        mk(SX, 64, 2048 * 512 * 2)
        for q in range(8):
            a.vmem(f"buffer_load_dwordx4 {vr(FB+4*q,4)}, v10, {srd(SX)}, s{sZ2} offen offset:{q*128}", ("x", q))
        for q in range(2):
            a.vmem(f"buffer_load_dwordx4 {vr(FB+32+4*q,4)}, v13, {srd(SX)}, s{sZ1} offen offset:{q*512}", ("xh", q))
        mk(SWQ, 66, 512 * 1536 * 2); mk(SWO, 68, 512 * 512 * 2); mk(SWI, 72, 512 * 1792 * 2)
        mk(SWS, 74, 2048 * 2048 * 2); mk(SBS, 76, 4096); mk(SWT, 78, 896 * 512 * 2)
        mk(SOUT, 80, 2048 * 512 * 2); mk(SDBG, 82, 256); mk(SW, 84, WS_SIZE)
        a(f"""
        s_getpc_b64 s[4:5]
        L_pc:
        s_lshl_b32 s{sT2}, s{sT1}, 3
        s_add_u32 s{sT2}, s{sT2}, s{sWv}
        s_lshl_b32 s{sT2}, s{sT2}, 8
        v_lshl_add_u32 v14, v{vLANE}, 2, s{sT2}
        v_min_u32 v14, L_end-L_pc-4, v14
        """)
        a.vmem("global_load_dword v19, v14, s[4:5]", "pf")
        sk = a.lab("non")
        a(f"""
        s_or_b32 s{sT2}, s2, s{sWv}
        s_cmp_lg_u32 s{sT2}, 0
        s_cbranch_scc1 {sk}
        s_memrealtime s[6:7]
        s_waitcnt lgkmcnt(0)
        v_mov_b32 v16, s6
        v_mov_b32 v17, 1
        s_mov_b64 exec, 1
        buffer_store_dwordx2 v[16:17], off, {srd(SDBG)}, 0 sc1
        s_mov_b64 exec, -1
        {sk}:
        """)
        a(f"""
        s_and_b32 s{sT2}, s{sWv}, 1
        s_lshl_b32 s{sT3}, s{sT2}, 2
        v_lshrrev_b32 v14, 4, v{vLANE}
        v_lshlrev_b32 v16, 1, v14
        v_xor_b32 v16, s{sT3}, v16
        v_xor_b32 v16, v16, v9
        v_lshlrev_b32 v16, 4, v16
        v_mul_u32_u24 v{vWI}, 3584, v8
        v_add_u32 v{vWI}, v{vWI}, v16
        v_mul_u32_u24 v{vWQ}, 3072, v8
        v_add_u32 v{vWQ}, v{vWQ}, v16
        v_lshl_add_u32 v{vWT}, v8, 10, v16
        v_add_u32 v14, s{sT3}, v14
        v_xor_b32 v14, v14, v9
        v_lshlrev_b32 v14, 4, v14
        v_lshl_add_u32 v{vWS}, v8, 13, v14
        """)
        a(f"""
        s_mul_i32 s{sZ1}, s{sCG}, {8*3584}
        s_lshl_b32 s{sT3}, s{sJ}, 8
        s_add_u32 s{sZ1}, s{sZ1}, s{sT3}
        s_lshl_b32 s{sT3}, s{sRH}, 7
        s_add_u32 s{sZ1}, s{sZ1}, s{sT3}
        s_add_u32 s{sZ2}, s{sZ1}, 1792
        s_lshl_b32 s{sWOb}, s{sCG}, 13
        s_add_u32 s{sWOb}, s{sWOb}, s{sT3}
        s_mul_i32 s{sQK}, s{sWv}, {8*3072}
        s_lshl_b32 s{sT3}, s{sJ}, 7
        s_add_u32 s{sQK}, s{sQK}, s{sT3}
        s_lshl_b32 s{sWT}, s{sWv}, 13
        s_add_u32 s{sWT}, s{sWT}, s{sT3}
        s_lshl_b32 s{sSP}, s{sM}, 6
        s_lshl_b32 s{sT3}, s{sRH}, 5
        s_add_u32 s{sSP}, s{sSP}, s{sT3}
        s_lshl_b32 s{sT3}, s{sT2}, 4
        s_add_u32 s{sSP}, s{sSP}, s{sT3}
        s_bfe_u32 s{sT3}, s{sWv}, 0x10001
        s_add_u32 s{sSP}, s{sSP}, s{sT3}
        s_lshl_b32 s{sSP}, s{sSP}, 12
        s_mov_b32 s{sGC}, {f32(-2.302208198*0.044715)}
        s_mov_b32 s{sGC+1}, {f32(-2.302208198)}
        s_mov_b32 s{sONE}, 0x3f803f80
        s_mov_b32 s{sMSK}, 0xffff0000
        """)

    def layernorm_x(self):
        a = self.a
        T = ACC
        a(f"""
        s_lshl_b32 s{sT2}, s{sCG}, 2
        v_lshrrev_b32 v14, 4, v{vLANE}
        v_add_u32 v14, s{sT2}, v14
        v_xor_b32 v14, v14, v9
        v_lshlrev_b32 v14, 4, v14
        v_lshl_add_u32 v14, v9, 8, v14
        v_and_b32 v15, 1, v8
        v_lshl_add_u32 v14, v15, 14, v14
        s_lshl_b32 s{sT2}, s{sRH}, 15
        v_add_u32 v16, s{sT2}, v14
        s_lshl_b32 s{sT2}, s{sWv}, 1
        v_add_u32 v17, s{sT2}, v11
        v_xor_b32 v17, v17, v9
        v_lshlrev_b32 v17, 4, v17
        v_lshl_add_u32 v17, v12, 8, v17
        v_add_u32 v17, {HALO}, v17
        """)
        for k in range(8): a(f"v_mov_b32 v{T+k}, 0")
        for q in range(8):
            a.wait_vm(("x", q))
            for r in range(4):
                a(f"v_dot2c_f32_bf16 v{T+(r&1)}, s{sONE}, v{FB+4*q+r}")
                a(f"v_dot2c_f32_bf16 v{T+2+(r&1)}, v{FB+4*q+r}, v{FB+4*q+r}")
        a.wait_vm(("xh", 1))
        for r in range(8):
            a(f"v_dot2c_f32_bf16 v{T+4+(r&1)}, s{sONE}, v{FB+32+r}")
            a(f"v_dot2c_f32_bf16 v{T+6+(r&1)}, v{FB+32+r}, v{FB+32+r}")
        for k in (0, 2, 4, 6): a(f"v_add_f32 v{T+k}, v{T+k}, v{T+k+1}")
        D = "row_mask:0xf bank_mask:0xf"
        for pat in ("quad_perm:[1,0,3,2]", "quad_perm:[2,3,0,1]", "row_half_mirror"):
            for k in (0, 2, 4, 6): a(f"v_add_f32_dpp v{T+k}, v{T+k}, v{T+k} {pat} {D}")
        for k in (4, 6): a(f"v_add_f32_dpp v{T+k}, v{T+k}, v{T+k} row_mirror {D}")
        for k in (4, 6): a(f"v_mov_b32 v{T+k+1}, v{T+k}")
        for k in (4, 6): a(f"v_permlane16_swap_b32 v{T+k}, v{T+k+1}")
        for k in (4, 6): a(f"v_add_f32 v{T+k}, v{T+k}, v{T+k+1}")
        for (s, d) in ((0, 8), (4, 10)):
            a(f"""
            v_mul_f32 v{T+s}, {f32(1/512)}, v{T+s}
            v_mul_f32 v{T+s+1}, v{T+s}, v{T+s}
            v_mul_f32 v{T+s+2}, {f32(1/512)}, v{T+s+2}
            v_sub_f32 v{T+s+2}, v{T+s+2}, v{T+s+1}
            v_max_f32 v{T+s+2}, 0, v{T+s+2}
            v_add_f32 v{T+s+2}, {f32(1e-5)}, v{T+s+2}
            v_rsq_f32 v{T+d}, v{T+s+2}
            v_mul_f32 v{T+d+1}, v{T+s}, v{T+d}
            v_sub_f32 v{T+d+1}, 0, v{T+d+1}
            """)
        U = T + 12
        for q in range(10):
            cf = T + 8 if q < 8 else T + 10
            for r in range(4):
                x = FB + 4 * q + r; u = U + 2 * r
                a(f"v_lshlrev_b32 v{u}, 16, v{x}\nv_and_b32 v{u+1}, s{sMSK}, v{x}")
            for r in range(4):
                u = U + 2 * r
                a(f"v_pk_fma_f32 {vr(u,2)}, {vr(u,2)}, {vr(cf,2)}, {vr(cf,2)} op_sel:[0,0,1] op_sel_hi:[1,0,1]")
            for r in range(4):
                x = FB + 4 * q + r; u = U + 2 * r
                a(f"v_cvt_pk_bf16_f32 v{x}, v{u}, v{u+1}")
            if q < 8: a.ds(f"ds_write_b128 v16, {vr(FB+4*q,4)} offset:{q*2048}")
            else: a.ds(f"ds_write_b128 v17, {vr(FB+4*q,4)} offset:{(q-8)*8192}")
        a.wait_vm("pf")
        a(f"""
        v_lshrrev_b32 v8, 4, v{vLANE}
        v_and_b32 v9, 15, v{vLANE}
        v_xor_b32 v14, v9, v8
        v_lshlrev_b32 v14, 4, v14
        v_lshl_add_u32 v14, v8, 8, v14
        s_lshl_b32 s{sT2}, s{sRH}, 15
        v_add_u32 v14, s{sT2}, v14
        v_xor_b32 v15, 64, v14
        """)
        a.wait_lg_all()
        a("s_barrier")
        for ks in range(16):
            for p in range(2):
                a.ds(f"ds_read_b128 {vr(X(p,ks),4)}, v{14+(ks&1)} offset:{p*16384+ks*1024}")

    def addr_nat(self, panel_cf):
        a = self.a
        t = FB
        a(f"""
        v_lshrrev_b32 v{t}, 4, v{vLANE}
        v_bfe_u32 v{t+1}, v{vLANE}, 2, 2
        v_and_b32 v{t+2}, 3, v{vLANE}
        v_lshl_add_u32 v{t+3}, v{t}, 3, v{t+1}
        v_lshlrev_b32 v{t+3}, 7, v{t+3}
        v_lshl_add_u32 v{t+3}, v{t+2}, 3, v{t+3}
        v_lshrrev_b32 v{t+1}, 1, v{t+1}
        v_and_b32 v{t+2}, 1, v{t}
        v_lshl_add_u32 v{t+1}, v{t+2}, 1, v{t+1}
        """)
        if panel_cf == "z":
            a(f"""
            s_and_b32 s{sT2}, s{sCG}, 1
            s_lshl_b32 s{sT2}, s{sT2}, 1
            s_lshr_b32 s{sT3}, s{sCG}, 1
            s_lshl_b32 s{sT3}, s{sT3}, 12
            v_xor_b32 v{t+1}, s{sT2}, v{t+1}
            v_lshl_add_u32 v8, v{t+1}, 5, v{t+3}
            v_add_u32 v8, s{sT3}, v8
            v_xor_b32 v9, 64, v8
            v_add_u32 v9, 512, v9
            v_xor_b32 v10, 32, v8
            v_xor_b32 v11, 32, v9
            """)
        else:
            a(f"""
            v_xor_b32 v{t+1}, s{sCG}, v{t+1}
            v_lshl_add_u32 v8, v{t+1}, 5, v{t+3}
            v_xor_b32 v9, 64, v8
            v_add_u32 v9, 512, v9
            v_and_b32 v{t+2}, 15, v{vLANE}
            v_xor_b32 v10, v{t+2}, v{t}
            v_lshlrev_b32 v10, 4, v10
            v_lshl_add_u32 v10, v{t}, 8, v10
            v_add_u32 v10, {HALO}, v10
            v_xor_b32 v11, 64, v10
            """)
        self.hi = False

    def addr_perm(self, mode):
        a = self.a
        t = FB
        a(f"""
        v_lshrrev_b32 v{t}, 4, v{vLANE}
        v_lshrrev_b32 v{t+3}, 2, v{vLANE}
        v_lshlrev_b32 v{t+3}, 7, v{t+3}
        v_and_b32 v{t+2}, 3, v{vLANE}
        v_lshl_add_u32 v{t+3}, v{t+2}, 3, v{t+3}
        v_bfe_u32 v{t+1}, v{vLANE}, 3, 1
        v_lshrrev_b32 v{t+2}, 1, v{t}
        v_xor_b32 v{t+2}, v{t+2}, v{t}
        v_and_b32 v{t+2}, 1, v{t+2}
        v_lshl_add_u32 v{t+1}, v{t+2}, 1, v{t+1}
        """)
        if mode == "s":
            a(f"""
            s_and_b32 s{sT2}, s{sCG}, 1
            s_lshl_b32 s{sT2}, s{sT2}, 1
            s_lshr_b32 s{sT3}, s{sCG}, 1
            s_lshl_b32 s{sT3}, s{sT3}, 12
            v_xor_b32 v{t+1}, s{sT2}, v{t+1}
            v_lshl_add_u32 v8, v{t+1}, 5, v{t+3}
            v_add_u32 v8, s{sT3}, v8
            v_xor_b32 v9, 32, v8
            """)
        else:
            a(f"""
            s_lshl_b32 s{sT2}, s{sRH}, 1
            s_lshl_b32 s{sT3}, s{sRH}, 12
            v_xor_b32 v{t+1}, s{sT2}, v{t+1}
            v_lshl_add_u32 v8, v{t+1}, 5, v{t+3}
            v_add_u32 v8, s{sT3}, v8
            v_xor_b32 v9, 32, v8
            v_xor_b32 v10, 64, v8
            v_xor_b32 v11, 96, v8
            """)
        self.hi = False

    def zstage(self, s, i, acc, wfirst, perm=False):
        a = self.a
        off = self.fix_hi(s, 2 if perm else 4)
        for q in range(4):
            for e in range(2):
                for h in range(2):
                    d = FB + (q * 2 + e) * 4 + h * 2
                    if perm: a.ds(f"ds_read_b64_tr_b16 {vr(d,2)}, v{8+e} offset:{off+q*8192+h*2048}", ("f", q))
                    else: a.ds(f"ds_read_b64_tr_b16 {vr(d,2)}, v{8+2*e+h} offset:{off+q*8192}", ("f", q))
        for q in range(4):
            a.wait_lg(("f", q))
            ks = 4 * i + q
            for e in range(2):
                for p in range(2):
                    w = vr(FB + (q * 2 + e) * 4, 4); x = vr(X(p, ks), 4); c = vr(acc + (p * 2 + e) * 4, 4)
                    ci = c if ks else "0"
                    if wfirst: a(f"v_mfma_f32_16x16x32_bf16 {c}, {w}, {x}, {ci}")
                    else: a(f"v_mfma_f32_16x16x32_bf16 {c}, {x}, {w}, {ci}")

    def qstage(self, s, i):
        a = self.a
        off = self.fix_hi(s, 2)
        for q in range(2):
            ks = 2 * i + q
            for pn in range(3):
                for h in range(2):
                    d = FB + (q * 4 + pn) * 4 + h * 2
                    a.ds(f"ds_read_b64_tr_b16 {vr(d,2)}, v{8+h} offset:{off+pn*8192+q*4096}", ("f", q))
            a.ds(f"ds_read_b128 {vr(FB+(q*4+3)*4,4)}, v{10+(ks&1)} offset:{ks*1024}", ("f", q))
        for q in range(2):
            a.wait_lg(("f", q))
            ks = 2 * i + q
            for pn in range(3):
                for p in range(2):
                    w = vr(FB + (q * 4 + pn) * 4, 4); x = vr(X(p, ks), 4); c = vr(ACC + pn * 8 + p * 4, 4)
                    ci = c if ks else "0"
                    if pn < 2: a(f"v_mfma_f32_16x16x32_bf16 {c}, {w}, {x}, {ci}")
                    else: a(f"v_mfma_f32_16x16x32_bf16 {c}, {x}, {w}, {ci}")
        sk = a.lab("nh")
        a(f"s_cmp_lg_u32 s{sRH}, 0\ns_cbranch_scc1 {sk}")
        for q in range(2):
            ks = 2 * i + q
            xh = vr(FB + (q * 4 + 3) * 4, 4)
            c = vr(ACC + 24, 4); a(f"v_mfma_f32_16x16x32_bf16 {c}, {vr(FB+(q*4+1)*4,4)}, {xh}, {c if ks else 0}")
            c = vr(ACC + 28, 4); a(f"v_mfma_f32_16x16x32_bf16 {c}, {xh}, {vr(FB+(q*4+2)*4,4)}, {c if ks else 0}")
        a(f"{sk}:")

    def gelu(self, R, n, T):
        a = self.a
        G = f"s[{sGC}:{sGC+1}]"
        P = range(0, n, 2)
        for k in P: a(f"v_pk_mul_f32 {vr(T+k,2)}, {vr(R+k,2)}, {vr(R+k,2)}")
        for k in P: a(f"v_pk_fma_f32 {vr(T+k,2)}, {vr(T+k,2)}, {G}, {G} op_sel:[0,0,1] op_sel_hi:[1,0,1]")
        for k in P: a(f"v_pk_mul_f32 {vr(T+k,2)}, {vr(T+k,2)}, {vr(R+k,2)}")
        for k in range(n): a(f"v_exp_f32 v{T+k}, v{T+k}")
        for k in P: a(f"v_pk_add_f32 {vr(T+k,2)}, {vr(T+k,2)}, 1.0 op_sel_hi:[1,0]")
        for k in range(n): a(f"v_rcp_f32 v{T+k}, v{T+k}")
        for k in P: a(f"v_pk_mul_f32 {vr(R+k,2)}, {vr(R+k,2)}, {vr(T+k,2)}")

    def e_z2a(self):
        a = self.a
        self.gelu(Z2R, 16, FB)
        T = FB + 16
        for p in range(2):
            for r in range(4):
                v0 = Z2R + (p * 2) * 4 + r; v1 = v0 + 4; d = T + r * 4 + 2 * p
                a(f"v_add_f32 v{d}, v{v0}, v{v1}\nv_mul_f32 v{d+1}, v{v0}, v{v0}\nv_fmac_f32 v{d+1}, v{v1}, v{v1}")
        for sh in (8, 4, 2, 1):
            for k in range(16):
                a(f"v_add_f32_dpp v{T+k}, v{T+k}, v{T+k} row_ror:{sh} row_mask:0xf bank_mask:0xf")
        a(f"""
        s_lshl_b32 s{sT2}, s{sCG}, 9
        s_lshl_b32 s{sT3}, s{sRH}, 8
        s_add_u32 s{sT2}, s{sT2}, s{sT3}
        s_add_u32 s{sT2}, s{sT2}, {STAT}
        v_lshl_add_u32 v{FB}, v{vLANE}, 2, s{sT2}
        s_mov_b32 exec_lo, 0x00010001
        s_mov_b32 exec_hi, 0x00010001
        """)
        for r in range(4): a.ds(f"ds_write_b128 v{FB}, {vr(T+r*4,4)} offset:{r*16}")
        a("s_mov_b64 exec, -1")
        self.get_nonce()
        a.wait_lg_all()
        a("s_barrier")
        sk = a.lab("np")
        a(f"s_cmp_lg_u32 s{sWv}, 0\ns_cbranch_scc1 {sk}")
        a(f"v_lshlrev_b32 v{FB}, 3, v{vLANE}\nv_add_u32 v{FB}, {STAT}, v{FB}")
        for c in range(4): a(f"ds_read_b64 {vr(FB+4+2*c,2)}, v{FB} offset:{c*512}")
        a(f"""
        s_lshl_b32 s{sT2}, s{sM}, 3
        s_add_u32 s{sT2}, s{sT2}, s{sJ}
        s_lshl_b32 s{sT2}, s{sT2}, 10
        s_add_u32 s{sT2}, s{sT2}, {WS_STATS}
        v_mov_b32 v{vP+1}, s{sNON}
        v_mov_b32 v{vP+3}, s{sNON}
        s_waitcnt lgkmcnt(0)
        v_pk_add_f32 {vr(FB+4,2)}, {vr(FB+4,2)}, {vr(FB+6,2)}
        v_pk_add_f32 {vr(FB+8,2)}, {vr(FB+8,2)}, {vr(FB+10,2)}
        v_add_f32 v{vP}, v{FB+4}, v{FB+8}
        v_add_f32 v{vP+2}, v{FB+5}, v{FB+9}
        buffer_store_dwordx4 {vr(vP,4)}, v{vL16}, {srd(SW)}, s{sT2} offen sc1
        s_nop 1
        {sk}:
        """)

    def stats_issue(self):
        a = self.a
        a(f"""
        s_min_u32 s{sT3}, s{sWv}, 6
        s_lshl_b32 s{sC2}, s{sM}, 3
        s_add_u32 s{sC2}, s{sC2}, s{sT3}
        s_lshl_b32 s{sC2}, s{sC2}, 10
        s_add_u32 s{sC2}, s{sC2}, {WS_STATS}
        """)
        self.stats_ld = f"buffer_load_dwordx4 {vr(vP,4)}, v{vL16}, {srd(SW)}, s{sC2} offen sc1"
        a.vmem(self.stats_ld, "gran")

    def stats_check(self):
        a = self.a
        self.poll_check(self.stats_ld, vP + 3, "gran", second=vP + 1)
        a(f"v_mov_b32 v{vP+1}, v{vP+2}")
        a(f"""
        s_lshl_b32 s{sT2}, s{sWv}, 9
        s_add_u32 s{sT2}, s{sT2}, {COEF}
        v_lshl_add_u32 v{FB}, v{vLANE}, 3, s{sT2}
        """)
        a.ds(f"ds_write_b64 v{FB}, {vr(vP,2)}")

    def e_z2b(self):
        a = self.a
        t = FB
        a(f"""
        s_lshl_b32 s{sT2}, s{sRH}, 8
        s_add_u32 s{sT2}, s{sT2}, {COEF}
        v_and_b32 v{t+1}, 31, v{vLANE}
        v_lshl_add_u32 v{t}, v{t+1}, 3, s{sT2}
        """)
        for c in range(7): a.ds(f"ds_read_b64 {vr(t+4+2*c,2)}, v{t} offset:{c*512}")
        a(f"""
        s_lshl_b32 s{sT2}, s{sWv}, 8
        s_add_u32 s{sT2}, s{sT2}, {AB}
        v_lshl_add_u32 v{t}, v{t+1}, 3, s{sT2}
        v_lshrrev_b32 v{t+1}, 4, v{vLANE}
        v_lshl_add_u32 v{t+1}, v{t+1}, 6, s{sT2}
        """)
        a.wait_lg_all()
        for c in (0, 2, 4): a(f"v_pk_add_f32 {vr(t+4+2*c,2)}, {vr(t+4+2*c,2)}, {vr(t+6+2*c,2)}")
        a(f"v_pk_add_f32 {vr(t+4,2)}, {vr(t+4,2)}, {vr(t+8,2)}")
        a(f"v_pk_add_f32 {vr(t+12,2)}, {vr(t+12,2)}, {vr(t+16,2)}")
        a(f"v_pk_add_f32 {vr(t+4,2)}, {vr(t+4,2)}, {vr(t+12,2)}")
        a(f"""
        v_mul_f32 v{t+4}, {f32(1/896)}, v{t+4}
        v_mul_f32 v{t+5}, {f32(1/896)}, v{t+5}
        v_mul_f32 v{t+6}, v{t+4}, v{t+4}
        v_sub_f32 v{t+5}, v{t+5}, v{t+6}
        v_max_f32 v{t+5}, 0, v{t+5}
        v_add_f32 v{t+5}, {f32(1e-5)}, v{t+5}
        v_rsq_f32 v{t+6}, v{t+5}
        v_mul_f32 v{t+7}, v{t+4}, v{t+6}
        v_sub_f32 v{t+7}, 0, v{t+7}
        """)
        a.ds(f"ds_write_b64 v{t}, {vr(t+6,2)}")
        a.wait_lg_all()
        C = t + 8
        for r in range(4): a.ds(f"ds_read_b128 {vr(C+4*r,4)}, v{t+1} offset:{r*16}")
        a(f"""
        s_lshl_b32 s{sT2}, s{sJ}, 19
        s_lshl_b32 s{sT3}, s{sM}, 14
        s_add_u32 s{sT2}, s{sT2}, s{sT3}
        s_lshl_b32 s{sT3}, s{sWv}, 11
        s_add_u32 s{sT2}, s{sT2}, s{sT3}
        """)
        a.wait_lg_all()
        O = t + 24
        for e in range(2):
            for r in range(4):
                for p in range(2):
                    z = Z2R + (p * 2 + e) * 4 + r
                    a(f"v_fma_f32 v{z}, v{z}, v{C+4*r+2*p}, v{C+4*r+2*p+1}")
            for r in range(4):
                a(f"v_cvt_pk_bf16_f32 v{O+4*e+r}, v{Z2R+e*4+r}, v{Z2R+(2+e)*4+r}")
            a.vmem(f"buffer_store_dwordx4 {vr(O+4*e,4)}, v{vL16}, {srd(SW)}, s{sT2} offen offset:{e*1024} sc1", "z2n")
        a("s_nop 1")

    def flag2(self):
        self.a.wait_vm("z2n")
        self.flag_store(WS_F2, f"s_lshl_b32 s{sT1}, s{sJ}, 3\ns_add_u32 s{sT1}, s{sT1}, s{sWv}\ns_lshl_b32 s{sT1}, s{sT1}, 5\ns_add_u32 s{sT1}, s{sT1}, s{sM}\ns_lshl_b32 s{sT1}, s{sT1}, 2")

    def flag_mjw(self, base, tag):
        self.a.wait_vm(tag)
        self.flag_store(base, f"s_lshl_b32 s{sT1}, s{sM}, 3\ns_add_u32 s{sT1}, s{sT1}, s{sJ}\ns_lshl_b32 s{sT1}, s{sT1}, 3\ns_add_u32 s{sT1}, s{sT1}, s{sWv}\ns_lshl_b32 s{sT1}, s{sT1}, 2")

    def poll2_issue(self):
        a = self.a
        a(f"""
        s_lshl_b32 s{sC2}, s{sJ}, 3
        s_add_u32 s{sC2}, s{sC2}, s{sWv}
        s_lshl_b32 s{sC2}, s{sC2}, 7
        s_add_u32 s{sC2}, s{sC2}, {WS_F2}
        v_and_b32 v{vP+1}, 31, v{vLANE}
        v_lshlrev_b32 v{vP+1}, 2, v{vP+1}
        """)
        self.poll_ld = f"buffer_load_dword v{vP}, v{vP+1}, {srd(SW)}, s{sC2} offen sc1"
        a.vmem(self.poll_ld, "poll")

    def pollm_issue(self, base):
        a = self.a
        a(f"""
        s_lshl_b32 s{sC2}, s{sM}, 8
        s_add_u32 s{sC2}, s{sC2}, {base}
        v_lshlrev_b32 v{vP+1}, 2, v{vLANE}
        """)
        self.poll_ld = f"buffer_load_dword v{vP}, v{vP+1}, {srd(SW)}, s{sC2} offen sc1"
        a.vmem(self.poll_ld, "poll")

    def attn_pre(self):
        a = self.a
        Qb, Kb, VV, KP = FB, FB + 4, FB + 8, FB + 16
        a("s_nop 7")
        for p in range(2):
            for h in range(2):
                a(f"v_cvt_pk_bf16_f32 v{Kb+2*p+h}, v{ACC+8+4*p+2*h}, v{ACC+8+4*p+2*h+1}")
                a(f"v_cvt_pk_bf16_f32 v{VV+4*p+2+h}, v{ACC+16+4*p+2*h}, v{ACC+16+4*p+2*h+1}")
                a(f"v_cvt_pk_bf16_f32 v{Qb+2*p+h}, v{ACC+4*p+2*h}, v{ACC+4*p+2*h+1}")
        a(f"""
        s_lshl_b32 s{sT2}, s{sCG}, 11
        s_add_u32 s{sT2}, s{sT2}, {KVX}
        v_add_u32 v{FB+20}, s{sT2}, v{vL16}
        """)
        sk = a.lab("ap")
        a(f"s_cmp_lg_u32 s{sRH}, 0\ns_cbranch_scc1 {sk}")
        a(f"ds_write_b128 v{FB+20}, {vr(Kb,4)}")
        a(f"ds_write_b64 v{FB+20}, {vr(VV+2,2)} offset:1024")
        a(f"ds_write_b64 v{FB+20}, {vr(VV+6,2)} offset:1032")
        for h in range(2):
            for p in range(2):
                a(f"v_cvt_pk_bf16_f32 v{KP+2*p+h}, v{ACC+24+2*h}, v{ACC+24+2*h+1}")
                a(f"v_cvt_pk_bf16_f32 v{VV+4*p+h}, v{ACC+28+2*h}, v{ACC+28+2*h+1}")
        a(f"{sk}:")

    def attn(self):
        a = self.a
        Qb, Kb, VV, KP = FB, FB + 4, FB + 8, FB + 16
        sk = a.lab("ar")
        a(f"s_cmp_eq_u32 s{sRH}, 0\ns_cbranch_scc1 {sk}")
        a(f"ds_read_b128 {vr(KP,4)}, v{FB+20}")
        a(f"ds_read_b64 {vr(VV,2)}, v{FB+20} offset:1024")
        a(f"ds_read_b64 {vr(VV+4,2)}, v{FB+20} offset:1032")
        a(f"{sk}:")
        t = FB + 24
        a(f"""
        v_and_b32 v{t}, 15, v{vLANE}
        v_lshrrev_b32 v{t+1}, 4, v{vLANE}
        v_lshlrev_b32 v{t+1}, 2, v{t+1}
        v_sub_u32 v{t+2}, v{t}, v{t+1}
        v_mov_b32 v{t+3}, {f32(-1e30)}
        s_or_b32 s{sT2}, s{sM}, s{sRH}
        s_cmp_eq_u32 s{sT2}, 0
        s_cselect_b32 s{sT2}, 1024, 0
        s_lshl_b32 s{sT3}, s{sRH}, 4
        s_add_u32 s{sT2}, s{sT2}, s{sT3}
        s_add_u32 s{sT2}, s{sT2}, 16
        v_lshlrev_b32 v{t+1}, s{sRH}, v{t+1}
        v_lshl_add_u32 v{t+4}, v{t}, 1, s{sT2}
        v_sub_u32 v{t+4}, v{t+4}, v{t+1}
        s_xor_b32 s{sT3}, s{sRH}, 1
        v_add_u32 v{t+5}, s{sT3}, v{t+4}
        """)
        for r in range(4):
            a(f"v_subrev_u32 v{t+6}, {r}, v{t+2}")
            a(f"v_cmp_gt_u32 vcc, 8, v{t+6}")
            a(f"v_cndmask_b32 v{ACC+4+r}, v{t+3}, 0, vcc" if False else f"v_cndmask_b32_e64 v{ACC+4+r}, v{t+3}, 0, vcc")
            a(f"v_mov_b32 v{ACC+12+r}, v{ACC+4+r}")
            a(f"s_lshl_b32 s{sT3}, {r}, s{sRH}")
            for p in range(2):
                a(f"v_subrev_u32 v{t+6}, s{sT3}, v{t+4+p}")
                a(f"v_and_b32 v{t+6}, 0xfffffff1, v{t+6}")
                a(f"v_cmp_eq_u32 vcc, 0, v{t+6}")
                a(f"v_cndmask_b32_e64 v{ACC+8*p+r}, v{t+3}, 0, vcc")
        a.wait_lg_all()
        for p in range(2):
            S = ACC + 8 * p
            a(f"v_mfma_f32_16x16x16_bf16 {vr(S+4,4)}, {vr(Kb+2*p,2)}, {vr(Qb+2*p,2)}, {vr(S+4,4)}")
            a(f"v_mfma_f32_16x16x16_bf16 {vr(S,4)}, {vr(KP+2*p,2)}, {vr(Qb+2*p,2)}, {vr(S,4)}")
        CS = 0.25 * 1.4426950408889634
        a(f"s_mov_b32 s{sT3}, {f32(CS)}")
        M = t
        def xred(op):
            for sw in ("v_permlane16_swap_b32", "v_permlane32_swap_b32"):
                for p in range(2): a(f"v_mov_b32 v{M+2*p+1}, v{M+2*p}")
                for p in range(2): a(f"{sw} v{M+2*p}, v{M+2*p+1}")
                for p in range(2): a(f"{op} v{M+2*p}, v{M+2*p}, v{M+2*p+1}")
        for p in range(2):
            S = ACC + 8 * p; m = M + 2 * p
            a(f"v_max3_f32 v{m}, v{S}, v{S+1}, v{S+2}")
            a(f"v_max3_f32 v{m+1}, v{S+3}, v{S+4}, v{S+5}")
            a(f"v_max3_f32 v{m}, v{m}, v{S+6}, v{S+7}")
            a(f"v_max_f32 v{m}, v{m}, v{m+1}")
        xred("v_max_f32")
        for p in range(2): a(f"v_mul_f32 v{M+2*p}, {f32(-CS)}, v{M+2*p}")
        for p in range(2):
            for k in range(8): a(f"v_fma_f32 v{ACC+8*p+k}, v{ACC+8*p+k}, s{sT3}, v{M+2*p}")
        for k in range(16): a(f"v_exp_f32 v{ACC+k}, v{ACC+k}")
        PP = ACC + 16; O = ACC + 24
        for p in range(2):
            S = ACC + 8 * p; m = M + 2 * p
            for k in range(4): a(f"v_cvt_pk_bf16_f32 v{PP+4*p+k}, v{S+2*k}, v{S+2*k+1}")
        for p in range(2):
            a(f"v_mfma_f32_16x16x32_bf16 {vr(O+4*p,4)}, {vr(VV+4*p,4)}, {vr(PP+4*p,4)}, 0")
        for p in range(2):
            S = ACC + 8 * p; m = M + 2 * p
            a(f"v_pk_add_f32 {vr(S,2)}, {vr(S,2)}, {vr(S+2,2)}")
            a(f"v_pk_add_f32 {vr(S+4,2)}, {vr(S+4,2)}, {vr(S+6,2)}")
            a(f"v_pk_add_f32 {vr(S,2)}, {vr(S,2)}, {vr(S+4,2)}")
            a(f"v_add_f32 v{m}, v{S}, v{S+1}")
        xred("v_add_f32")
        for p in range(2): a(f"v_rcp_f32 v{M+2*p}, v{M+2*p}")
        for p in range(2):
            for h in range(2):
                a(f"v_pk_mul_f32 {vr(O+4*p+2*h,2)}, {vr(O+4*p+2*h,2)}, {vr(M+2*p,2)} op_sel_hi:[1,0]")
        for p in range(2):
            for h in range(2):
                a(f"v_cvt_pk_bf16_f32 v{Z2R+2*p+h}, v{O+4*p+2*h}, v{O+4*p+2*h+1}")
        a(f"""
        s_lshl_b32 s{sT2}, s{sM}, 1
        s_add_u32 s{sT2}, s{sT2}, s{sRH}
        s_lshl_b32 s{sT2}, s{sT2}, 3
        s_add_u32 s{sT2}, s{sT2}, s{sJ}
        s_lshl_b32 s{sT2}, s{sT2}, 2
        s_add_u32 s{sT2}, s{sT2}, s{sCG}
        s_lshl_b32 s{sT2}, s{sT2}, 10
        s_add_u32 s{sT2}, s{sT2}, {WS_O}
        """)
        a.vmem(f"buffer_store_dwordx4 {vr(Z2R,4)}, v{vL16}, {srd(SW)}, s{sT2} offen sc1", "o")

    def zload(self, n):
        a = self.a
        a(f"s_add_u32 s{sT0}, s{sZB}, {n*16384}")
        for e in range(2):
            a.vmem(f"buffer_load_dwordx4 {vr(XR+((n%16)*2+e)*4,4)}, v{vL16}, {srd(SW)}, s{sT0} offen offset:{e*1024} sc1", ("z", n))

    def addr_wsp(self):
        a = self.a
        t = FB + 40
        a(f"""
        v_and_b32 v{t}, 15, v{vLANE}
        v_lshrrev_b32 v{t+1}, 4, v{vLANE}
        s_lshl_b32 s{sT2}, s{sRH}, 2
        v_add_u32 v{t+1}, s{sT2}, v{t+1}
        v_lshrrev_b32 v{t+2}, 1, v{t}
        v_xor_b32 v{t+1}, v{t+1}, v{t+2}
        v_lshlrev_b32 v{t+1}, 4, v{t+1}
        v_lshl_add_u32 v8, v{t}, 7, v{t+1}
        s_lshl_b32 s{sT2}, s{sRH}, 12
        v_add_u32 v8, s{sT2}, v8
        v_xor_b32 v9, 4096, v8
        """)
        self.hi = False

    def bstage(self, s, i):
        a = self.a
        off = self.fix_hi(s, 2)
        def rd(q):
            for tf in range(4):
                a.ds(f"ds_read_b128 {vr(FB+((q%3)*4+tf)*4,4)}, v{8+(tf>>1)} offset:{off+q*8192+(tf&1)*2048}", ("f", q))
        rd(0); rd(1); rd(2)
        for q in range(4):
            n = 4 * i + q
            a.wait_vm(("z", n))
            a.wait_lg(("f", q))
            for e in range(2):
                for tf in range(4):
                    c = vr(ACC + (tf * 2 + e) * 4, 4)
                    a(f"v_mfma_f32_16x16x32_bf16 {c}, {vr(XR+((n%16)*2+e)*4,4)}, {vr(FB+((q%3)*4+tf)*4,4)}, {c if n else 0}")
            if q == 0: rd(3)
            if n + 16 < 32: self.zload(n + 16)

    def e_b(self):
        a = self.a
        a(f"""
        s_lshl_b32 s{sT2}, s{sWv}, 12
        s_add_u32 s{sT2}, s{sT2}, {AUX}
        v_add_u32 v{FB}, s{sT2}, v{vL16}
        v_xor_b32 v{FB+1}, 0x4000, v{FB}
        """)
        for k in range(4): a.ds(f"ds_write_b128 v{FB}, {vr(ACC+16+4*k,4)} offset:{k*1024}")
        a.wait_lg_all()
        a("s_barrier")
        for k in range(4): a.ds(f"ds_read_b128 {vr(FB+4+4*k,4)}, v{FB+1} offset:{k*1024}")
        a(f"""
        v_lshlrev_b32 v{FB+2}, 16, v{vBIAS}
        v_and_b32 v{FB+3}, s{sMSK}, v{vBIAS}
        s_lshl_b32 s{sT2}, s{sM}, 2
        s_lshl_b32 s{sT3}, s{sRH}, 1
        s_add_u32 s{sT2}, s{sT2}, s{sT3}
        s_mul_i32 s{sT2}, s{sT2}, 28
        s_lshl_b32 s{sT3}, s{sJ}, 2
        s_add_u32 s{sT2}, s{sT2}, s{sT3}
        s_add_u32 s{sT2}, s{sT2}, s{sCG}
        s_lshl_b32 s{sT2}, s{sT2}, 10
        s_add_u32 s{sT2}, s{sT2}, {WS_H}
        s_add_u32 s{sT3}, s{sT2}, {28*1024}
        """)
        for k in range(0, 16, 2):
            p = k // 8
            a(f"v_pk_add_f32 {vr(ACC+k,2)}, {vr(ACC+k,2)}, {vr(FB+2,2)} op_sel:[0,{p}] op_sel_hi:[1,{p}]")
        a.wait_lg_all()
        for k in range(0, 16, 2): a(f"v_pk_add_f32 {vr(ACC+k,2)}, {vr(ACC+k,2)}, {vr(FB+4+k,2)}")
        for k in range(0, 16, 2): a(f"v_pk_mul_f32 {vr(ACC+k,2)}, {vr(ACC+k,2)}, {vr(Z1R+k,2)}")
        for p in range(2):
            for k in range(4): a(f"v_cvt_pk_bf16_f32 v{Z2R+4*p+k}, v{ACC+8*p+2*k}, v{ACC+8*p+2*k+1}")
            a.vmem(f"buffer_store_dwordx4 {vr(Z2R+4*p,4)}, v{vL16}, {srd(SW)}, s{sT2+p} offen sc1", "h")

    def phase_c(self):
        a = self.a
        a.vm = []; a.lg = []
        a(f"""
        v_and_b32 v{Z1R}, 15, v{vLANE}
        v_lshlrev_b32 v{Z1R}, 11, v{Z1R}
        v_lshrrev_b32 v{Z1R+1}, 4, v{vLANE}
        v_lshl_add_u32 v{Z1R}, v{Z1R+1}, 3, v{Z1R}
        s_lshl_b32 s{sZ1}, s{sM}, 6
        s_lshr_b32 s{sT2}, s{sCG}, 1
        s_lshl_b32 s{sT2}, s{sT2}, 5
        s_add_u32 s{sZ1}, s{sZ1}, s{sT2}
        s_and_b32 s{sT2}, s{sCG}, 1
        s_add_u32 s{sZ1}, s{sZ1}, s{sT2}
        s_lshl_b32 s{sZ1}, s{sZ1}, 10
        s_lshl_b32 s{sT2}, s{sJ}, 7
        s_add_u32 s{sZ1}, s{sZ1}, s{sT2}
        s_lshl_b32 s{sT2}, s{sRH}, 6
        s_add_u32 s{sZ1}, s{sZ1}, s{sT2}
        """)
        for e in range(2):
            a.vmem(f"buffer_load_dwordx2 {vr(Z1R+2+2*e,2)}, v{Z1R}, {srd(SX)}, s{sZ1} offen offset:{e*32}", "xf")
        self.pollm_issue(WS_F4)
        self.addr_perm("c")
        a(f"""
        s_lshl_b32 s{sZB}, s{sM}, 2
        s_add_u32 s{sZB}, s{sZB}, s{sCG}
        s_mul_i32 s{sZB}, s{sZB}, 28
        s_add_u32 s{sZB}, s{sZB}, s{sRH}
        s_lshl_b32 s{sZB}, s{sZB}, 10
        s_add_u32 s{sZB}, s{sZB}, {WS_H}
        s_lshl_b32 s{sZ2}, s{sM}, 3
        s_add_u32 s{sZ2}, s{sZ2}, s{sJ}
        s_lshl_b32 s{sZ2}, s{sZ2}, 2
        s_add_u32 s{sZ2}, s{sZ2}, s{sCG}
        s_lshl_b32 s{sZ2}, s{sZ2}, 1
        s_add_u32 s{sZ2}, s{sZ2}, s{sRH}
        s_lshl_b32 s{sZ2}, s{sZ2}, 10
        s_add_u32 s{sZ2}, s{sZ2}, {WS_S}
        s_barrier
        """)
        self.poll_check(self.poll_ld, vP, "poll")
        self.stamp("c_poll")
        for n in range(14):
            if n % 2 == 0: a(f"s_add_u32 s{sT0}, s{sZB}, {n*2048}")
            a.vmem(f"buffer_load_dwordx4 {vr(XR+4*n,4)}, v{vL16}, {srd(SW)}, s{sT0} offen offset:{(n%2)*2048} sc1", ("h", n))
        a.vmem(f"buffer_load_dwordx4 {vr(Z1R+8,4)}, v{vL16}, {srd(SW)}, s{sZ2} offen sc1", "s")
        def rd(n):
            s = 24 + n // 4
            off = self.fix_hi(s, 4)
            for cf in range(4):
                for h in range(2):
                    a.ds(f"ds_read_b64_tr_b16 {vr(FB+((n%3)*4+cf)*4+2*h,2)}, v{8+cf} offset:{off+(n%4)*8192+h*2048}", ("f", n))
        rd(0); rd(1)
        for n in range(14):
            a.wait_vm(("h", n))
            a.wait_lg(("f", n))
            for cf in range(4):
                c = vr(ACC + 4 * cf, 4)
                a(f"v_mfma_f32_16x16x32_bf16 {c}, {vr(FB+((n%3)*4+cf)*4,4)}, {vr(XR+4*n,4)}, {c if n else 0}")
            if n + 2 < 14: rd(n + 2)
        a(f"""
        s_lshl_b32 s{sT2}, s{sWv}, 11
        s_add_u32 s{sT2}, s{sT2}, {AUX}
        v_add_u32 v{FB}, s{sT2}, v{vL16}
        v_xor_b32 v{FB+1}, 0x2000, v{FB}
        """)
        for k in range(2): a.ds(f"ds_write_b128 v{FB}, {vr(ACC+8+4*k,4)} offset:{k*1024}")
        a.wait_lg_all()
        a("s_barrier")
        for k in range(2): a.ds(f"ds_read_b128 {vr(FB+4+4*k,4)}, v{FB+1} offset:{k*1024}")
        a.wait_vm("s")
        SS = FB + 12; XX = FB + 20; T = FB + 28
        for k in range(4):
            a(f"v_lshlrev_b32 v{SS+2*k}, 16, v{Z1R+8+k}\nv_and_b32 v{SS+2*k+1}, s{sMSK}, v{Z1R+8+k}")
            a(f"v_lshlrev_b32 v{XX+2*k}, 16, v{Z1R+2+k}\nv_and_b32 v{XX+2*k+1}, s{sMSK}, v{Z1R+2+k}")
        a.wait_lg_all()
        for k in range(0, 8, 2): a(f"v_pk_add_f32 {vr(ACC+k,2)}, {vr(ACC+k,2)}, {vr(FB+4+k,2)}")
        for k in range(8): a(f"v_mul_f32 v{T+k}, {f32(-1.4426950408889634)}, v{ACC+k}")
        for k in range(8): a(f"v_exp_f32 v{T+k}, v{T+k}")
        for k in range(0, 8, 2): a(f"v_pk_add_f32 {vr(T+k,2)}, {vr(T+k,2)}, 1.0 op_sel_hi:[1,0]")
        for k in range(8): a(f"v_rcp_f32 v{T+k}, v{T+k}")
        for k in range(0, 8, 2): a(f"v_pk_mul_f32 {vr(T+k,2)}, {vr(T+k,2)}, {vr(ACC+k,2)}")
        for k in range(0, 8, 2): a(f"v_pk_fma_f32 {vr(T+k,2)}, {vr(T+k,2)}, {vr(SS+k,2)}, {vr(XX+k,2)}")
        for k in range(4): a(f"v_cvt_pk_bf16_f32 v{ACC+k}, v{T+2*k}, v{T+2*k+1}")
        for e in range(2):
            a.vmem(f"buffer_store_dwordx2 {vr(ACC+2*e,2)}, v{Z1R}, {srd(SOUT)}, s{sZ1} offen offset:{e*32}", "out")
        if cfg.ts:
            a.wait_vm_all()
            self.stamp("end")
            a(f"s_lshl_b32 s{sT2}, s2, 3\ns_add_u32 s{sT2}, s{sT2}, s{sWv}\ns_lshl_b32 s{sT2}, s{sT2}, 6\ns_add_u32 s{sT2}, s{sT2}, {WS_TS}")
            for k in range(16): a(f"v_mov_b32 v{FB+k}, s{sTS+k}")
            a("s_mov_b64 exec, 1")
            for k in range(4): a(f"buffer_store_dwordx4 {vr(FB+4*k,4)}, off, {srd(SW)}, s{sT2} offset:{16*k}")

    def prog_z(self):
        a = self.a
        self.stages = [("z2", i) for i in range(4)] + [("z1", i) for i in range(4)] + [("qkv", i) for i in range(8)] + \
                      [("wsp", i) for i in range(8)] + [("wout", i) for i in range(4)]
        self.issue_stage(0); self.issue_stage(1)
        a(f"""
        v_and_b32 v18, 15, v{vLANE}
        v_lshlrev_b32 v18, 2, v18
        s_lshl_b32 s{sT2}, s{sM}, 7
        s_lshl_b32 s{sT3}, s{sRH}, 6
        s_add_u32 s{sT2}, s{sT2}, s{sT3}
        """)
        a.vmem(f"buffer_load_dword v{vBIAS}, v18, {srd(SBS)}, s{sT2} offen", "bias")
        self.layernorm_x()
        self.stamp("ln")
        self.addr_nat("z")
        for s in range(4):
            self.begin_stage(s, extra=(2,) if s == 0 else ())
            if s == 2: self.issue_nonce()
            self.zstage(s, s, Z2R, False)
        self.stamp("z2")
        for s in range(4, 8):
            self.begin_stage(s)
            if s == 4:
                self.e_z2a(); self.stamp("z2a")
            if s == 7: self.stats_issue()
            self.zstage(s, s - 4, Z1R, True)
        for s in range(8, 16):
            self.begin_stage(s)
            if s == 8:
                self.stamp("z1")
                self.gelu(Z1R, 16, FB)
                self.stats_check()
                self.stamp("stats")
                self.addr_nat("q")
            if s == 9: self.e_z2b()
            if s == 12: self.flag2()
            if s == 15: self.poll2_issue()
            self.qstage(s, s - 8)
        self.stamp("qkv")
        self.attn_pre()
        self.begin_stage(16)
        self.poll_check(self.poll_ld, vP, "poll")
        self.stamp("poll2")
        a(f"""
        s_lshl_b32 s{sZB}, s{sJ}, 19
        s_lshl_b32 s{sT2}, s{sWv}, 11
        s_add_u32 s{sZB}, s{sZB}, s{sT2}
        """)
        for n in range(cfg.npre): self.zload(n)
        self.attn()
        for n in range(cfg.npre, 16): self.zload(n)
        self.stamp("attn")
        self.addr_wsp()
        for s in range(16, 24):
            if s > 16: self.begin_stage(s)
            if s == cfg.f3stage: self.flag_mjw(WS_F3, "o")
            self.bstage(s, s - 16)
        self.stamp("B")
        a.wait_lg_all()
        a("s_barrier")
        self.issue_stage(27)
        self.e_b()
        self.flag_mjw(WS_F4, "h")
        self.stamp("eB")
        a.wait_vm_all()

    def prog_s(self):
        a = self.a
        self.stages = [("qkv", i) for i in range(8)] + [("wo", i) for i in range(16)] + [("wout", i) for i in range(4)]
        self.issue_stage(0); self.issue_stage(1)
        self.layernorm_x()
        self.addr_nat("q")
        for s in range(8):
            self.begin_stage(s, extra=(2,) if s == 0 else ())
            if s == 4: self.issue_nonce()
            self.qstage(s, s)
        self.attn_pre()
        self.begin_stage(8)
        self.attn()
        self.get_nonce()
        self.flag_mjw(WS_F3, "o")
        self.pollm_issue(WS_F3)
        self.poll_check(self.poll_ld, vP, "poll")
        a(f"""
        s_lshl_b32 s{sZB}, s{sM}, 1
        s_add_u32 s{sZB}, s{sZB}, s{sRH}
        s_lshl_b32 s{sZB}, s{sZB}, 15
        s_add_u32 s{sZB}, s{sZB}, {WS_O}
        """)
        for ks in range(16):
            a(f"s_add_u32 s{sT0}, s{sZB}, {ks*2048}")
            for p in range(2):
                a.vmem(f"buffer_load_dwordx4 {vr(X(p,ks),4)}, v{vL16}, {srd(SW)}, s{sT0} offen offset:{p*1024} sc1", "of")
        self.addr_perm("s")
        a(f"""
        s_lshl_b32 s{sZ2}, s{sM}, 3
        s_lshr_b32 s{sT2}, s{sCG}, 1
        s_add_u32 s{sZ2}, s{sZ2}, s{sT2}
        s_lshl_b32 s{sZ2}, s{sZ2}, 1
        s_add_u32 s{sZ2}, s{sZ2}, s{sRH}
        s_lshl_b32 s{sZ2}, s{sZ2}, 2
        s_and_b32 s{sT2}, s{sCG}, 1
        s_add_u32 s{sZ2}, s{sZ2}, s{sT2}
        s_lshl_b32 s{sZ2}, s{sZ2}, 10
        s_add_u32 s{sZ2}, s{sZ2}, {WS_S}
        """)
        a.wait_vm("of")
        for ks in range(16):
            a(f"v_swap_b32 v{X(0,ks)+2}, v{X(1,ks)}\nv_swap_b32 v{X(0,ks)+3}, v{X(1,ks)+1}")
        for s in range(8, 24):
            if s > 8: self.begin_stage(s)
            pp, ii = divmod(s - 8, 4)
            self.zstage(s, ii, ACC, True, perm=True)
            if ii == 3:
                a(f"s_add_u32 s{sT2}, s{sZ2}, {pp*16384}")
                for p in range(2):
                    for k in range(4): a(f"v_cvt_pk_bf16_f32 v{Z2R+4*p+k}, v{ACC+8*p+2*k}, v{ACC+8*p+2*k+1}")
                    a.vmem(f"buffer_store_dwordx4 {vr(Z2R+4*p,4)}, v{vL16}, {srd(SW)}, s{sT2} offen offset:{p*2048} sc1", "s")
        a.wait_lg_all()
        a("s_barrier")
        self.issue_stage(27)
        self.flag_mjw(WS_F4, "s")
        a.wait_vm_all()

    def build(self):
        a = self.a
        a(f"{KN}:")
        self.prologue()
        a(f"s_cmp_eq_u32 s{sJ}, 7\ns_cbranch_scc1 L_progs")
        vm0 = list(a.vm); nts0 = self.nts
        self.prog_z()
        a("L_phasec:")
        self.phase_c()
        a("L_exit:\ns_endpgm")
        a("L_progs:")
        a.vm = vm0; a.lg = []
        ts = cfg.ts; cfg.ts = False
        self.prog_s()
        cfg.ts = ts
        a("s_branch L_phasec")
        a("L_end:")
        body = a.finish()
        head = open("cdna_kernels/" + NAME + ".s.ref").read().split("; @launch")[0]
        txt = head + f"; @launch grid=(256,1,1) block=(512,1,1) lds={LDS_TOTAL}\n"
        txt += f'.amdgcn_target "amdgcn-amd-amdhsa--gfx950"\n.text\n.globl {KN}\n.p2align 8\n.type {KN},@function\n'
        txt += body
        txt += f""".section .rodata,"a"
.p2align 6
.amdhsa_kernel {KN}
  .amdhsa_next_free_vgpr 256
  .amdhsa_next_free_sgpr 102
  .amdhsa_accum_offset 256
  .amdhsa_group_segment_fixed_size 0
  .amdhsa_kernarg_size 88
  .amdhsa_user_sgpr_count 2
  .amdhsa_user_sgpr_kernarg_segment_ptr 1
  .amdhsa_system_sgpr_workgroup_id_x 1
.end_amdhsa_kernel
"""
        return txt

if __name__ == "__main__":
    out = sys.argv[1]
    for kv in sys.argv[2:]:
        k, v = kv.split("=")
        setattr(cfg, k, eval(v))
    g = Gen()
    txt = g.build()
    if cfg.ts: txt = txt.replace(".amdgcn_target", "; stamps: " + ",".join(g.names) + "\n.amdgcn_target", 1)
    open(out, "w").write(txt)
    print("written", out, "lines", txt.count("\n"), "auto nops", g.a.nnop)
```

```python
import sys, struct
from asmlib import *

NAME = "recurrent_scan__sliding_local_dilated__mixer_gmlp__prompt"
KN = NAME + "_kernel"

class Cfg:
    ts = False
    mapmode = 2
    spin_limit = 200000
    probe = 0
    npre = 6
    f3stage = 18
cfg = Cfg()

def f32(x): return "0x%08x" % struct.unpack("<I", struct.pack("<f", x))[0]

WS_Z2N = 0; WS_O = 0x400000; WS_S = 0x600000; WS_H = 0x800000; WS_STATS = 0xC00000
WS_F2 = 0xC40000; WS_F3 = 0xC42000; WS_F4 = 0xC44000; WS_TS = 0xD00000; WS_SIZE = 0x10000000
SLOT = 32768
AUX = 131072; HALO = AUX; KVX = AUX + 16384; STAT = KVX + 8192; COEF = STAT + 2048; AB = COEF + 4096
LDS_TOTAL = 163840
assert AB + 2048 == LDS_TOTAL
SX, SWQ, SWO, SWI, SWS, SBS, SWT, SOUT, SDBG, SW = 8, 12, 16, 20, 24, 28, 32, 36, 40, 44
sM, sJ, sWv, sRH, sCG, sNON, sPB = 48, 49, 50, 51, 52, 53, 54
sZ2, sZ1, sQK, sSP, sWT, sT0, sT1, sT2, sT3 = 55, 56, 57, 58, 59, 60, 61, 62, 63
sGC = 64
sONE = 66; sMSK = 67; sZB = 68; sWOb = 69; sCNT = 70; sLP = 71; sC2 = 72
sTS = 86
def srd(b): return f"s[{b}:{b+3}]"
vLANE, vL16, vWI, vWQ, vWS, vWT, vBIAS = 1, 2, 3, 4, 5, 6, 7
vA0 = 8
vP = 12
Z2R = 16; Z1R = 32; FB = 48; ACC = 96; XR = 128
def X(p, ks): return XR + (p * 16 + ks) * 4

class Gen:
    def __init__(self):
        self.a = Asm()
        self.nts = 0
        self.hi = False

    def stamp(self, name):
        if not cfg.ts: return
        a = self.a
        assert self.nts < 14
        a.wait_lg_all()
        a(f"s_memrealtime s[74:75]\ns_waitcnt lgkmcnt(0)\ns_mov_b32 s{sTS+self.nts}, s74")
        self.names.append(name)
        self.nts += 1

    def dma(self, srdb, voff, sbase, goff, lds, tag):
        a = self.a
        a(f"s_add_u32 m0, s{sPB}, {lds}")
        a(f"s_add_u32 s{sT0}, s{sbase}, {goff}")
        a.vmem(f"buffer_load_dwordx4 v{voff}, {srd(srdb)}, s{sT0} offen lds", tag)

    def slot(self, s): return ((s + 2) % 4) * SLOT

    def issue_stage(self, s):
        if s >= len(self.stages): return
        kind, i = self.stages[s]
        base = self.slot(s); tag = ("st", s)
        if kind in ("z2", "z1"):
            for q in range(4):
                self.dma(SWI, vWI, sZ2 if kind == "z2" else sZ1, (4 * i + q) * 32 * 3584, base + q * 8192, tag)
        elif kind == "qkv":
            for pn in range(3):
                self.dma(SWQ, vWQ, sQK, i * 64 * 3072 + pn * 1024, base + pn * 8192, tag)
        elif kind == "wsp":
            for q in range(4):
                self.dma(SWS, vWS, sSP, (4 * i + q) * 128, base + q * 8192, tag)
        elif kind == "wout":
            for q in range(4 if i < 3 else 2):
                self.dma(SWT, vWT, sWT, (i * 256 + q * 64) * 1024, base + q * 8192, tag)
        elif kind == "wo":
            pp, ii = divmod(i, 4)
            for q in range(4):
                self.dma(SWO, vWT, sWOb, (4 * ii + q) * 32 * 1024 + pp * 256, base + q * 8192, tag)

    def begin_stage(self, s, extra=()):
        a = self.a
        a.wait_vm(("st", s))
        a.wait_lg_all()
        a("s_barrier")
        for e in extra: self.issue_stage(e)
        self.issue_stage(s + 3)

    def fix_hi(self, s, nregs):
        want = self.slot(s) >= 65536
        if want != self.hi:
            for k in range(nregs):
                self.a(f"v_xor_b32 v{vA0+k}, 0x10000, v{vA0+k}")
            self.hi = want
        return self.slot(s) & 0xFFFF

    def poll_check(self, load_text, vreg, tag, second=None):
        a = self.a
        ok = a.lab("ok"); lp = a.lab("spin")
        def cmp():
            a(f"v_cmp_ne_u32 vcc, s{sNON}, v{vreg}")
            if second is not None:
                a(f"v_cmp_ne_u32 s[76:77], s{sNON}, v{second}\ns_nop 1\ns_or_b64 vcc, vcc, s[76:77]")
        a.wait_vm(tag)
        cmp()
        a(f"s_cbranch_vccz {ok}")
        a(f"s_mov_b32 s{sCNT}, {cfg.spin_limit}")
        a(f"{lp}:")
        a("s_sleep 2")
        a(load_text)
        a("s_waitcnt vmcnt(0)")
        a(f"s_sub_u32 s{sCNT}, s{sCNT}, 1")
        a(f"s_cbranch_scc1 {ok}")
        cmp()
        a(f"s_cbranch_vccnz {lp}")
        a(f"{ok}:")

    def get_nonce(self):
        a = self.a
        ok = a.lab("nok"); lp = a.lab("nspin")
        a.wait_vm("non")
        a(f"v_cmp_eq_u32 vcc, 0, v{vP+1}")
        a(f"s_cbranch_vccz {ok}")
        a(f"s_mov_b32 s{sCNT}, {cfg.spin_limit}")
        a(f"{lp}:")
        a("s_sleep 2")
        a(f"buffer_load_dwordx2 v[{vP}:{vP+1}], off, {srd(SDBG)}, 0 sc1")
        a("s_waitcnt vmcnt(0)")
        a(f"s_sub_u32 s{sCNT}, s{sCNT}, 1")
        a(f"s_cbranch_scc1 {ok}")
        a(f"v_cmp_eq_u32 vcc, 0, v{vP+1}")
        a(f"s_cbranch_vccnz {lp}")
        a(f"{ok}:")
        a(f"v_readfirstlane_b32 s{sNON}, v{vP}")

    def issue_nonce(self):
        self.a.vmem(f"buffer_load_dwordx2 v[{vP}:{vP+1}], off, {srd(SDBG)}, 0 sc1", "non")

    def flag_store(self, base, expr_lines):
        a = self.a
        a(expr_lines)
        a(f"s_add_u32 s{sT1}, s{sT1}, {base}")
        a(f"v_mov_b32 v0, s{sNON}")
        a("s_mov_b64 exec, 1")
        a.vmem(f"buffer_store_dword v0, off, {srd(SW)}, s{sT1} sc1", "flag")
        a("s_mov_b64 exec, -1")

    def prologue(self):
        a = self.a
        a(f"""
        s_cmp_ge_u32 s2, 256
        s_cbranch_scc1 L_exit
        s_load_dwordx16 s[64:79], s[0:1], 0
        s_load_dwordx4 s[80:83], s[0:1], 64
        s_load_dwordx2 s[84:85], s[0:1], 80
        """)
        if cfg.ts:
            a(f"s_memrealtime s[{sTS}:{sTS+1}]\ns_memtime s[{sTS+14}:{sTS+15}]")
            self.nts = 1; self.names = ["start"]
        a(f"""
        v_lshrrev_b32 v2, 6, v0
        v_and_b32 v{vLANE}, 63, v0
        v_readfirstlane_b32 s{sWv}, v2
        s_and_b32 s{sT0}, s2, 7
        s_lshr_b32 s{sT1}, s2, 3
        """)
        if cfg.mapmode == 2:
            a(f"""
            s_lshr_b32 s{sM}, s{sT0}, 1
            s_lshl_b32 s{sM}, s{sM}, 3
            s_lshr_b32 s{sT2}, s{sT1}, 2
            s_add_u32 s{sM}, s{sM}, s{sT2}
            s_and_b32 s{sJ}, s{sT0}, 1
            s_lshl_b32 s{sJ}, s{sJ}, 2
            s_and_b32 s{sT2}, s{sT1}, 3
            s_add_u32 s{sJ}, s{sJ}, s{sT2}
            """)
        else:
            a(f"""
            s_lshl_b32 s{sM}, s{sT0}, 2
            s_lshr_b32 s{sT2}, s{sT1}, 3
            s_add_u32 s{sM}, s{sM}, s{sT2}
            s_and_b32 s{sJ}, s{sT1}, 7
            """)
        a(f"""
        s_lshr_b32 s{sRH}, s{sWv}, 2
        s_and_b32 s{sCG}, s{sWv}, 3
        s_lshl_b32 s{sPB}, s{sWv}, 10
        v_lshlrev_b32 v{vL16}, 4, v{vLANE}
        v_lshrrev_b32 v8, 3, v{vLANE}
        v_and_b32 v9, 7, v{vLANE}
        v_lshlrev_b32 v10, 10, v8
        v_lshl_add_u32 v10, v9, 4, v10
        v_lshrrev_b32 v11, 5, v{vLANE}
        v_and_b32 v12, 31, v{vLANE}
        v_lshlrev_b32 v13, 10, v11
        v_lshl_add_u32 v13, v12, 4, v13
        s_lshl_b32 s{sT2}, s{sM}, 6
        s_lshl_b32 s{sT3}, s{sWv}, 3
        s_add_u32 s{sZ2}, s{sT2}, s{sT3}
        s_lshl_b32 s{sZ2}, s{sZ2}, 10
        s_max_u32 s{sZ1}, s{sT2}, 16
        s_sub_u32 s{sZ1}, s{sZ1}, 16
        s_lshl_b32 s{sT3}, s{sWv}, 1
        s_add_u32 s{sZ1}, s{sZ1}, s{sT3}
        s_lshl_b32 s{sZ1}, s{sZ1}, 10
        s_waitcnt lgkmcnt(0)
        """)
        def mk(b, p, size):
            a(f"s_mov_b32 s{b}, s{p}\ns_mov_b32 s{b+1}, s{p+1}\ns_mov_b32 s{b+2}, {size}\ns_mov_b32 s{b+3}, 0x20000")
        if cfg.probe:
            if cfg.probe == 1:
                mk(SX, 70, 2048 * 512 * 2)
                a(f"s_mul_i32 s{sT2}, s{sWv}, {56*1024}"); NL = 56
            else:
                mk(SX, 84, WS_SIZE)
                a(f"s_lshl_b32 s{sT2}, s2, 16\ns_lshl_b32 s{sT3}, s{sWv}, 13\ns_add_u32 s{sT2}, s{sT2}, s{sT3}\ns_add_u32 s{sT2}, s{sT2}, {cfg.probe << 20}"); NL = 8
            for i in range(NL):
                if i >= 16: a("s_waitcnt vmcnt(15)")
                a(f"s_add_u32 s{sT3}, s{sT2}, {i*1024}\nbuffer_load_dwordx4 {vr(XR+(i%16)*4,4)}, v{vL16}, {srd(SX)}, s{sT3} offen")
            a("s_waitcnt vmcnt(0)\ns_barrier")
        mk(SX, 64, 2048 * 512 * 2)
        for q in range(8):
            a.vmem(f"buffer_load_dwordx4 {vr(FB+4*q,4)}, v10, {srd(SX)}, s{sZ2} offen offset:{q*128}", ("x", q))
        for q in range(2):
            a.vmem(f"buffer_load_dwordx4 {vr(FB+32+4*q,4)}, v13, {srd(SX)}, s{sZ1} offen offset:{q*512}", ("xh", q))
        mk(SWQ, 66, 512 * 1536 * 2); mk(SWO, 68, 512 * 512 * 2); mk(SWI, 72, 512 * 1792 * 2)
        mk(SWS, 74, 2048 * 2048 * 2); mk(SBS, 76, 4096); mk(SWT, 78, 896 * 512 * 2)
        mk(SOUT, 80, 2048 * 512 * 2); mk(SDBG, 82, 256); mk(SW, 84, WS_SIZE)
        a(f"""
        s_getpc_b64 s[4:5]
        L_pc:
        s_lshl_b32 s{sT2}, s{sT1}, 3
        s_add_u32 s{sT2}, s{sT2}, s{sWv}
        s_lshl_b32 s{sT2}, s{sT2}, 8
        v_lshl_add_u32 v14, v{vLANE}, 2, s{sT2}
        v_min_u32 v14, L_end-L_pc-4, v14
        """)
        a.vmem("global_load_dword v19, v14, s[4:5]", "pf")
        sk = a.lab("non")
        a(f"""
        s_or_b32 s{sT2}, s2, s{sWv}
        s_cmp_lg_u32 s{sT2}, 0
        s_cbranch_scc1 {sk}
        s_memrealtime s[6:7]
        s_waitcnt lgkmcnt(0)
        v_mov_b32 v16, s6
        v_mov_b32 v17, 1
        s_mov_b64 exec, 1
        buffer_store_dwordx2 v[16:17], off, {srd(SDBG)}, 0 sc1
        s_mov_b64 exec, -1
        {sk}:
        """)
        a(f"""
        s_and_b32 s{sT2}, s{sWv}, 1
        s_lshl_b32 s{sT3}, s{sT2}, 2
        v_lshrrev_b32 v14, 4, v{vLANE}
        v_lshlrev_b32 v16, 1, v14
        v_xor_b32 v16, s{sT3}, v16
        v_xor_b32 v16, v16, v9
        v_lshlrev_b32 v16, 4, v16
        v_mul_u32_u24 v{vWI}, 3584, v8
        v_add_u32 v{vWI}, v{vWI}, v16
        v_mul_u32_u24 v{vWQ}, 3072, v8
        v_add_u32 v{vWQ}, v{vWQ}, v16
        v_lshl_add_u32 v{vWT}, v8, 10, v16
        v_add_u32 v14, s{sT3}, v14
        v_xor_b32 v14, v14, v9
        v_lshlrev_b32 v14, 4, v14
        v_lshl_add_u32 v{vWS}, v8, 13, v14
        """)
        a(f"""
        s_mul_i32 s{sZ1}, s{sCG}, {8*3584}
        s_lshl_b32 s{sT3}, s{sJ}, 8
        s_add_u32 s{sZ1}, s{sZ1}, s{sT3}
        s_lshl_b32 s{sT3}, s{sRH}, 7
        s_add_u32 s{sZ1}, s{sZ1}, s{sT3}
        s_add_u32 s{sZ2}, s{sZ1}, 1792
        s_lshl_b32 s{sWOb}, s{sCG}, 13
        s_add_u32 s{sWOb}, s{sWOb}, s{sT3}
        s_mul_i32 s{sQK}, s{sWv}, {8*3072}
        s_lshl_b32 s{sT3}, s{sJ}, 7
        s_add_u32 s{sQK}, s{sQK}, s{sT3}
        s_lshl_b32 s{sWT}, s{sWv}, 13
        s_add_u32 s{sWT}, s{sWT}, s{sT3}
        s_lshl_b32 s{sSP}, s{sM}, 6
        s_lshl_b32 s{sT3}, s{sRH}, 5
        s_add_u32 s{sSP}, s{sSP}, s{sT3}
        s_lshl_b32 s{sT3}, s{sT2}, 4
        s_add_u32 s{sSP}, s{sSP}, s{sT3}
        s_bfe_u32 s{sT3}, s{sWv}, 0x10001
        s_add_u32 s{sSP}, s{sSP}, s{sT3}
        s_lshl_b32 s{sSP}, s{sSP}, 12
        s_mov_b32 s{sGC}, {f32(-2.302208198*0.044715)}
        s_mov_b32 s{sGC+1}, {f32(-2.302208198)}
        s_mov_b32 s{sONE}, 0x3f803f80
        s_mov_b32 s{sMSK}, 0xffff0000
        """)

    def layernorm_x(self):
        a = self.a
        T = ACC
        a(f"""
        s_lshl_b32 s{sT2}, s{sCG}, 2
        v_lshrrev_b32 v14, 4, v{vLANE}
        v_add_u32 v14, s{sT2}, v14
        v_xor_b32 v14, v14, v9
        v_lshlrev_b32 v14, 4, v14
        v_lshl_add_u32 v14, v9, 8, v14
        v_and_b32 v15, 1, v8
        v_lshl_add_u32 v14, v15, 14, v14
        s_lshl_b32 s{sT2}, s{sRH}, 15
        v_add_u32 v16, s{sT2}, v14
        s_lshl_b32 s{sT2}, s{sWv}, 1
        v_add_u32 v17, s{sT2}, v11
        v_xor_b32 v17, v17, v9
        v_lshlrev_b32 v17, 4, v17
        v_lshl_add_u32 v17, v12, 8, v17
        v_add_u32 v17, {HALO}, v17
        """)
        for k in range(8): a(f"v_mov_b32 v{T+k}, 0")
        for q in range(8):
            a.wait_vm(("x", q))
            for r in range(4):
                a(f"v_dot2c_f32_bf16 v{T+(r&1)}, s{sONE}, v{FB+4*q+r}")
                a(f"v_dot2c_f32_bf16 v{T+2+(r&1)}, v{FB+4*q+r}, v{FB+4*q+r}")
        a.wait_vm(("xh", 1))
        for r in range(8):
            a(f"v_dot2c_f32_bf16 v{T+4+(r&1)}, s{sONE}, v{FB+32+r}")
            a(f"v_dot2c_f32_bf16 v{T+6+(r&1)}, v{FB+32+r}, v{FB+32+r}")
        for k in (0, 2, 4, 6): a(f"v_add_f32 v{T+k}, v{T+k}, v{T+k+1}")
        D = "row_mask:0xf bank_mask:0xf"
        for pat in ("quad_perm:[1,0,3,2]", "quad_perm:[2,3,0,1]", "row_half_mirror"):
            for k in (0, 2, 4, 6): a(f"v_add_f32_dpp v{T+k}, v{T+k}, v{T+k} {pat} {D}")
        for k in (4, 6): a(f"v_add_f32_dpp v{T+k}, v{T+k}, v{T+k} row_mirror {D}")
        for k in (4, 6): a(f"v_mov_b32 v{T+k+1}, v{T+k}")
        for k in (4, 6): a(f"v_permlane16_swap_b32 v{T+k}, v{T+k+1}")
        for k in (4, 6): a(f"v_add_f32 v{T+k}, v{T+k}, v{T+k+1}")
        for (s, d) in ((0, 8), (4, 10)):
            a(f"""
            v_mul_f32 v{T+s}, {f32(1/512)}, v{T+s}
            v_mul_f32 v{T+s+1}, v{T+s}, v{T+s}
            v_mul_f32 v{T+s+2}, {f32(1/512)}, v{T+s+2}
            v_sub_f32 v{T+s+2}, v{T+s+2}, v{T+s+1}
            v_max_f32 v{T+s+2}, 0, v{T+s+2}
            v_add_f32 v{T+s+2}, {f32(1e-5)}, v{T+s+2}
            v_rsq_f32 v{T+d}, v{T+s+2}
            v_mul_f32 v{T+d+1}, v{T+s}, v{T+d}
            v_sub_f32 v{T+d+1}, 0, v{T+d+1}
            """)
        U = T + 12
        for q in range(10):
            cf = T + 8 if q < 8 else T + 10
            for r in range(4):
                x = FB + 4 * q + r; u = U + 2 * r
                a(f"v_lshlrev_b32 v{u}, 16, v{x}\nv_and_b32 v{u+1}, s{sMSK}, v{x}")
            for r in range(4):
                u = U + 2 * r
                a(f"v_pk_fma_f32 {vr(u,2)}, {vr(u,2)}, {vr(cf,2)}, {vr(cf,2)} op_sel:[0,0,1] op_sel_hi:[1,0,1]")
            for r in range(4):
                x = FB + 4 * q + r; u = U + 2 * r
                a(f"v_cvt_pk_bf16_f32 v{x}, v{u}, v{u+1}")
            if q < 8: a.ds(f"ds_write_b128 v16, {vr(FB+4*q,4)} offset:{q*2048}")
            else: a.ds(f"ds_write_b128 v17, {vr(FB+4*q,4)} offset:{(q-8)*8192}")
        a.wait_vm("pf")
        a(f"""
        v_lshrrev_b32 v8, 4, v{vLANE}
        v_and_b32 v9, 15, v{vLANE}
        v_xor_b32 v14, v9, v8
        v_lshlrev_b32 v14, 4, v14
        v_lshl_add_u32 v14, v8, 8, v14
        s_lshl_b32 s{sT2}, s{sRH}, 15
        v_add_u32 v14, s{sT2}, v14
        v_xor_b32 v15, 64, v14
        """)
        a.wait_lg_all()
        a("s_barrier")
        for ks in range(16):
            for p in range(2):
                a.ds(f"ds_read_b128 {vr(X(p,ks),4)}, v{14+(ks&1)} offset:{p*16384+ks*1024}")

    def addr_nat(self, panel_cf):
        a = self.a
        t = FB
        a(f"""
        v_lshrrev_b32 v{t}, 4, v{vLANE}
        v_bfe_u32 v{t+1}, v{vLANE}, 2, 2
        v_and_b32 v{t+2}, 3, v{vLANE}
        v_lshl_add_u32 v{t+3}, v{t}, 3, v{t+1}
        v_lshlrev_b32 v{t+3}, 7, v{t+3}
        v_lshl_add_u32 v{t+3}, v{t+2}, 3, v{t+3}
        v_lshrrev_b32 v{t+1}, 1, v{t+1}
        v_and_b32 v{t+2}, 1, v{t}
        v_lshl_add_u32 v{t+1}, v{t+2}, 1, v{t+1}
        """)
        if panel_cf == "z":
            a(f"""
            s_and_b32 s{sT2}, s{sCG}, 1
            s_lshl_b32 s{sT2}, s{sT2}, 1
            s_lshr_b32 s{sT3}, s{sCG}, 1
            s_lshl_b32 s{sT3}, s{sT3}, 12
            v_xor_b32 v{t+1}, s{sT2}, v{t+1}
            v_lshl_add_u32 v8, v{t+1}, 5, v{t+3}
            v_add_u32 v8, s{sT3}, v8
            v_xor_b32 v9, 64, v8
            v_add_u32 v9, 512, v9
            v_xor_b32 v10, 32, v8
            v_xor_b32 v11, 32, v9
            """)
        else:
            a(f"""
            v_xor_b32 v{t+1}, s{sCG}, v{t+1}
            v_lshl_add_u32 v8, v{t+1}, 5, v{t+3}
            v_xor_b32 v9, 64, v8
            v_add_u32 v9, 512, v9
            v_and_b32 v{t+2}, 15, v{vLANE}
            v_xor_b32 v10, v{t+2}, v{t}
            v_lshlrev_b32 v10, 4, v10
            v_lshl_add_u32 v10, v{t}, 8, v10
            v_add_u32 v10, {HALO}, v10
            v_xor_b32 v11, 64, v10
            """)
        self.hi = False

    def addr_perm(self, mode):
        a = self.a
        t = FB
        a(f"""
        v_lshrrev_b32 v{t}, 4, v{vLANE}
        v_lshrrev_b32 v{t+3}, 2, v{vLANE}
        v_lshlrev_b32 v{t+3}, 7, v{t+3}
        v_and_b32 v{t+2}, 3, v{vLANE}
        v_lshl_add_u32 v{t+3}, v{t+2}, 3, v{t+3}
        v_bfe_u32 v{t+1}, v{vLANE}, 3, 1
        v_lshrrev_b32 v{t+2}, 1, v{t}
        v_xor_b32 v{t+2}, v{t+2}, v{t}
        v_and_b32 v{t+2}, 1, v{t+2}
        v_lshl_add_u32 v{t+1}, v{t+2}, 1, v{t+1}
        """)
        if mode == "s":
            a(f"""
            s_and_b32 s{sT2}, s{sCG}, 1
            s_lshl_b32 s{sT2}, s{sT2}, 1
            s_lshr_b32 s{sT3}, s{sCG}, 1
            s_lshl_b32 s{sT3}, s{sT3}, 12
            v_xor_b32 v{t+1}, s{sT2}, v{t+1}
            v_lshl_add_u32 v8, v{t+1}, 5, v{t+3}
            v_add_u32 v8, s{sT3}, v8
            v_xor_b32 v9, 32, v8
            """)
        else:
            a(f"""
            s_lshl_b32 s{sT2}, s{sRH}, 1
            s_lshl_b32 s{sT3}, s{sRH}, 12
            v_xor_b32 v{t+1}, s{sT2}, v{t+1}
            v_lshl_add_u32 v8, v{t+1}, 5, v{t+3}
            v_add_u32 v8, s{sT3}, v8
            v_xor_b32 v9, 32, v8
            v_xor_b32 v10, 64, v8
            v_xor_b32 v11, 96, v8
            """)
        self.hi = False

    def zstage(self, s, i, acc, wfirst, perm=False):
        a = self.a
        off = self.fix_hi(s, 2 if perm else 4)
        for q in range(4):
            for e in range(2):
                for h in range(2):
                    d = FB + (q * 2 + e) * 4 + h * 2
                    if perm: a.ds(f"ds_read_b64_tr_b16 {vr(d,2)}, v{8+e} offset:{off+q*8192+h*2048}", ("f", q))
                    else: a.ds(f"ds_read_b64_tr_b16 {vr(d,2)}, v{8+2*e+h} offset:{off+q*8192}", ("f", q))
        for q in range(4):
            a.wait_lg(("f", q))
            ks = 4 * i + q
            for e in range(2):
                for p in range(2):
                    w = vr(FB + (q * 2 + e) * 4, 4); x = vr(X(p, ks), 4); c = vr(acc + (p * 2 + e) * 4, 4)
                    ci = c if ks else "0"
                    if wfirst: a(f"v_mfma_f32_16x16x32_bf16 {c}, {w}, {x}, {ci}")
                    else: a(f"v_mfma_f32_16x16x32_bf16 {c}, {x}, {w}, {ci}")

    def qstage(self, s, i):
        a = self.a
        off = self.fix_hi(s, 2)
        for q in range(2):
            ks = 2 * i + q
            for pn in range(3):
                for h in range(2):
                    d = FB + (q * 4 + pn) * 4 + h * 2
                    a.ds(f"ds_read_b64_tr_b16 {vr(d,2)}, v{8+h} offset:{off+pn*8192+q*4096}", ("f", q))
            a.ds(f"ds_read_b128 {vr(FB+(q*4+3)*4,4)}, v{10+(ks&1)} offset:{ks*1024}", ("f", q))
        for q in range(2):
            a.wait_lg(("f", q))
            ks = 2 * i + q
            for pn in range(3):
                for p in range(2):
                    w = vr(FB + (q * 4 + pn) * 4, 4); x = vr(X(p, ks), 4); c = vr(ACC + pn * 8 + p * 4, 4)
                    ci = c if ks else "0"
                    if pn < 2: a(f"v_mfma_f32_16x16x32_bf16 {c}, {w}, {x}, {ci}")
                    else: a(f"v_mfma_f32_16x16x32_bf16 {c}, {x}, {w}, {ci}")
        sk = a.lab("nh")
        a(f"s_cmp_lg_u32 s{sRH}, 0\ns_cbranch_scc1 {sk}")
        for q in range(2):
            ks = 2 * i + q
            xh = vr(FB + (q * 4 + 3) * 4, 4)
            c = vr(ACC + 24, 4); a(f"v_mfma_f32_16x16x32_bf16 {c}, {vr(FB+(q*4+1)*4,4)}, {xh}, {c if ks else 0}")
            c = vr(ACC + 28, 4); a(f"v_mfma_f32_16x16x32_bf16 {c}, {xh}, {vr(FB+(q*4+2)*4,4)}, {c if ks else 0}")
        a(f"{sk}:")

    def gelu(self, R, n, T):
        a = self.a
        G = f"s[{sGC}:{sGC+1}]"
        P = range(0, n, 2)
        for k in P: a(f"v_pk_mul_f32 {vr(T+k,2)}, {vr(R+k,2)}, {vr(R+k,2)}")
        for k in P: a(f"v_pk_fma_f32 {vr(T+k,2)}, {vr(T+k,2)}, {G}, {G} op_sel:[0,0,1] op_sel_hi:[1,0,1]")
        for k in P: a(f"v_pk_mul_f32 {vr(T+k,2)}, {vr(T+k,2)}, {vr(R+k,2)}")
        for k in range(n): a(f"v_exp_f32 v{T+k}, v{T+k}")
        for k in P: a(f"v_pk_add_f32 {vr(T+k,2)}, {vr(T+k,2)}, 1.0 op_sel_hi:[1,0]")
        for k in range(n): a(f"v_rcp_f32 v{T+k}, v{T+k}")
        for k in P: a(f"v_pk_mul_f32 {vr(R+k,2)}, {vr(R+k,2)}, {vr(T+k,2)}")

    def e_z2a(self):
        a = self.a
        self.gelu(Z2R, 16, FB)
        T = FB + 16
        for p in range(2):
            for r in range(4):
                v0 = Z2R + (p * 2) * 4 + r; v1 = v0 + 4; d = T + r * 4 + 2 * p
                a(f"v_add_f32 v{d}, v{v0}, v{v1}\nv_mul_f32 v{d+1}, v{v0}, v{v0}\nv_fmac_f32 v{d+1}, v{v1}, v{v1}")
        for sh in (8, 4, 2, 1):
            for k in range(16):
                a(f"v_add_f32_dpp v{T+k}, v{T+k}, v{T+k} row_ror:{sh} row_mask:0xf bank_mask:0xf")
        a(f"""
        s_lshl_b32 s{sT2}, s{sCG}, 9
        s_lshl_b32 s{sT3}, s{sRH}, 8
        s_add_u32 s{sT2}, s{sT2}, s{sT3}
        s_add_u32 s{sT2}, s{sT2}, {STAT}
        v_lshl_add_u32 v{FB}, v{vLANE}, 2, s{sT2}
        s_mov_b32 exec_lo, 0x00010001
        s_mov_b32 exec_hi, 0x00010001
        """)
        for r in range(4): a.ds(f"ds_write_b128 v{FB}, {vr(T+r*4,4)} offset:{r*16}")
        a("s_mov_b64 exec, -1")
        self.get_nonce()
        a.wait_lg_all()
        a("s_barrier")
        sk = a.lab("np")
        a(f"s_cmp_lg_u32 s{sWv}, 0\ns_cbranch_scc1 {sk}")
        a(f"v_lshlrev_b32 v{FB}, 3, v{vLANE}\nv_add_u32 v{FB}, {STAT}, v{FB}")
        for c in range(4): a(f"ds_read_b64 {vr(FB+4+2*c,2)}, v{FB} offset:{c*512}")
        a(f"""
        s_lshl_b32 s{sT2}, s{sM}, 3
        s_add_u32 s{sT2}, s{sT2}, s{sJ}
        s_lshl_b32 s{sT2}, s{sT2}, 10
        s_add_u32 s{sT2}, s{sT2}, {WS_STATS}
        v_mov_b32 v{vP+1}, s{sNON}
        v_mov_b32 v{vP+3}, s{sNON}
        s_waitcnt lgkmcnt(0)
        v_pk_add_f32 {vr(FB+4,2)}, {vr(FB+4,2)}, {vr(FB+6,2)}
        v_pk_add_f32 {vr(FB+8,2)}, {vr(FB+8,2)}, {vr(FB+10,2)}
        v_add_f32 v{vP}, v{FB+4}, v{FB+8}
        v_add_f32 v{vP+2}, v{FB+5}, v{FB+9}
        buffer_store_dwordx4 {vr(vP,4)}, v{vL16}, {srd(SW)}, s{sT2} offen sc1
        s_nop 1
        {sk}:
        """)

    def stats_issue(self):
        a = self.a
        a(f"""
        s_min_u32 s{sT3}, s{sWv}, 6
        s_lshl_b32 s{sC2}, s{sM}, 3
        s_add_u32 s{sC2}, s{sC2}, s{sT3}
        s_lshl_b32 s{sC2}, s{sC2}, 10
        s_add_u32 s{sC2}, s{sC2}, {WS_STATS}
        """)
        self.stats_ld = f"buffer_load_dwordx4 {vr(vP,4)}, v{vL16}, {srd(SW)}, s{sC2} offen sc1"
        a.vmem(self.stats_ld, "gran")

    def stats_check(self):
        a = self.a
        self.poll_check(self.stats_ld, vP + 3, "gran", second=vP + 1)
        a(f"v_mov_b32 v{vP+1}, v{vP+2}")
        a(f"""
        s_lshl_b32 s{sT2}, s{sWv}, 9
        s_add_u32 s{sT2}, s{sT2}, {COEF}
        v_lshl_add_u32 v{FB}, v{vLANE}, 3, s{sT2}
        """)
        a.ds(f"ds_write_b64 v{FB}, {vr(vP,2)}")

    def e_z2b(self):
        a = self.a
        t = FB
        a(f"""
        s_lshl_b32 s{sT2}, s{sRH}, 8
        s_add_u32 s{sT2}, s{sT2}, {COEF}
        v_and_b32 v{t+1}, 31, v{vLANE}
        v_lshl_add_u32 v{t}, v{t+1}, 3, s{sT2}
        """)
        for c in range(7): a.ds(f"ds_read_b64 {vr(t+4+2*c,2)}, v{t} offset:{c*512}")
        a(f"""
        s_lshl_b32 s{sT2}, s{sWv}, 8
        s_add_u32 s{sT2}, s{sT2}, {AB}
        v_lshl_add_u32 v{t}, v{t+1}, 3, s{sT2}
        v_lshrrev_b32 v{t+1}, 4, v{vLANE}
        v_lshl_add_u32 v{t+1}, v{t+1}, 6, s{sT2}
        """)
        a.wait_lg_all()
        for c in (0, 2, 4): a(f"v_pk_add_f32 {vr(t+4+2*c,2)}, {vr(t+4+2*c,2)}, {vr(t+6+2*c,2)}")
        a(f"v_pk_add_f32 {vr(t+4,2)}, {vr(t+4,2)}, {vr(t+8,2)}")
        a(f"v_pk_add_f32 {vr(t+12,2)}, {vr(t+12,2)}, {vr(t+16,2)}")
        a(f"v_pk_add_f32 {vr(t+4,2)}, {vr(t+4,2)}, {vr(t+12,2)}")
        a(f"""
        v_mul_f32 v{t+4}, {f32(1/896)}, v{t+4}
        v_mul_f32 v{t+5}, {f32(1/896)}, v{t+5}
        v_mul_f32 v{t+6}, v{t+4}, v{t+4}
        v_sub_f32 v{t+5}, v{t+5}, v{t+6}
        v_max_f32 v{t+5}, 0, v{t+5}
        v_add_f32 v{t+5}, {f32(1e-5)}, v{t+5}
        v_rsq_f32 v{t+6}, v{t+5}
        v_mul_f32 v{t+7}, v{t+4}, v{t+6}
        v_sub_f32 v{t+7}, 0, v{t+7}
        """)
        a.ds(f"ds_write_b64 v{t}, {vr(t+6,2)}")
        a.wait_lg_all()
        C = t + 8
        for r in range(4): a.ds(f"ds_read_b128 {vr(C+4*r,4)}, v{t+1} offset:{r*16}")
        a(f"""
        s_lshl_b32 s{sT2}, s{sJ}, 19
        s_lshl_b32 s{sT3}, s{sM}, 14
        s_add_u32 s{sT2}, s{sT2}, s{sT3}
        s_lshl_b32 s{sT3}, s{sWv}, 11
        s_add_u32 s{sT2}, s{sT2}, s{sT3}
        """)
        a.wait_lg_all()
        O = t + 24
        for e in range(2):
            for r in range(4):
                for p in range(2):
                    z = Z2R + (p * 2 + e) * 4 + r
                    a(f"v_fma_f32 v{z}, v{z}, v{C+4*r+2*p}, v{C+4*r+2*p+1}")
            for r in range(4):
                a(f"v_cvt_pk_bf16_f32 v{O+4*e+r}, v{Z2R+e*4+r}, v{Z2R+(2+e)*4+r}")
            a.vmem(f"buffer_store_dwordx4 {vr(O+4*e,4)}, v{vL16}, {srd(SW)}, s{sT2} offen offset:{e*1024} sc1", "z2n")
        a("s_nop 1")

    def flag2(self):
        self.a.wait_vm("z2n")
        self.flag_store(WS_F2, f"s_lshl_b32 s{sT1}, s{sJ}, 3\ns_add_u32 s{sT1}, s{sT1}, s{sWv}\ns_lshl_b32 s{sT1}, s{sT1}, 5\ns_add_u32 s{sT1}, s{sT1}, s{sM}\ns_lshl_b32 s{sT1}, s{sT1}, 2")

    def flag_mjw(self, base, tag):
        self.a.wait_vm(tag)
        self.flag_store(base, f"s_lshl_b32 s{sT1}, s{sM}, 3\ns_add_u32 s{sT1}, s{sT1}, s{sJ}\ns_lshl_b32 s{sT1}, s{sT1}, 3\ns_add_u32 s{sT1}, s{sT1}, s{sWv}\ns_lshl_b32 s{sT1}, s{sT1}, 2")

    def poll2_issue(self):
        a = self.a
        a(f"""
        s_lshl_b32 s{sC2}, s{sJ}, 3
        s_add_u32 s{sC2}, s{sC2}, s{sWv}
        s_lshl_b32 s{sC2}, s{sC2}, 7
        s_add_u32 s{sC2}, s{sC2}, {WS_F2}
        v_and_b32 v{vP+1}, 31, v{vLANE}
        v_lshlrev_b32 v{vP+1}, 2, v{vP+1}
        """)
        self.poll_ld = f"buffer_load_dword v{vP}, v{vP+1}, {srd(SW)}, s{sC2} offen sc1"
        a.vmem(self.poll_ld, "poll")

    def pollm_issue(self, base):
        a = self.a
        a(f"""
        s_lshl_b32 s{sC2}, s{sM}, 8
        s_add_u32 s{sC2}, s{sC2}, {base}
        v_lshlrev_b32 v{vP+1}, 2, v{vLANE}
        """)
        self.poll_ld = f"buffer_load_dword v{vP}, v{vP+1}, {srd(SW)}, s{sC2} offen sc1"
        a.vmem(self.poll_ld, "poll")

    def attn_pre(self):
        a = self.a
        Qb, Kb, VV, KP = FB, FB + 4, FB + 8, FB + 16
        a("s_nop 7")
        for p in range(2):
            for h in range(2):
                a(f"v_cvt_pk_bf16_f32 v{Kb+2*p+h}, v{ACC+8+4*p+2*h}, v{ACC+8+4*p+2*h+1}")
                a(f"v_cvt_pk_bf16_f32 v{VV+4*p+2+h}, v{ACC+16+4*p+2*h}, v{ACC+16+4*p+2*h+1}")
                a(f"v_cvt_pk_bf16_f32 v{Qb+2*p+h}, v{ACC+4*p+2*h}, v{ACC+4*p+2*h+1}")
        a(f"""
        s_lshl_b32 s{sT2}, s{sCG}, 11
        s_add_u32 s{sT2}, s{sT2}, {KVX}
        v_add_u32 v{FB+20}, s{sT2}, v{vL16}
        """)
        sk = a.lab("ap")
        a(f"s_cmp_lg_u32 s{sRH}, 0\ns_cbranch_scc1 {sk}")
        a(f"ds_write_b128 v{FB+20}, {vr(Kb,4)}")
        a(f"ds_write_b64 v{FB+20}, {vr(VV+2,2)} offset:1024")
        a(f"ds_write_b64 v{FB+20}, {vr(VV+6,2)} offset:1032")
        for h in range(2):
            for p in range(2):
                a(f"v_cvt_pk_bf16_f32 v{KP+2*p+h}, v{ACC+24+2*h}, v{ACC+24+2*h+1}")
                a(f"v_cvt_pk_bf16_f32 v{VV+4*p+h}, v{ACC+28+2*h}, v{ACC+28+2*h+1}")
        a(f"{sk}:")

    def attn(self):
        a = self.a
        Qb, Kb, VV, KP = FB, FB + 4, FB + 8, FB + 16
        sk = a.lab("ar")
        a(f"s_cmp_eq_u32 s{sRH}, 0\ns_cbranch_scc1 {sk}")
        a(f"ds_read_b128 {vr(KP,4)}, v{FB+20}")
        a(f"ds_read_b64 {vr(VV,2)}, v{FB+20} offset:1024")
        a(f"ds_read_b64 {vr(VV+4,2)}, v{FB+20} offset:1032")
        a(f"{sk}:")
        t = FB + 24
        a(f"""
        v_and_b32 v{t}, 15, v{vLANE}
        v_lshrrev_b32 v{t+1}, 4, v{vLANE}
        v_lshlrev_b32 v{t+1}, 2, v{t+1}
        v_sub_u32 v{t+2}, v{t}, v{t+1}
        v_mov_b32 v{t+3}, {f32(-1e30)}
        s_or_b32 s{sT2}, s{sM}, s{sRH}
        s_cmp_eq_u32 s{sT2}, 0
        s_cselect_b32 s{sT2}, 1024, 0
        s_lshl_b32 s{sT3}, s{sRH}, 4
        s_add_u32 s{sT2}, s{sT2}, s{sT3}
        s_add_u32 s{sT2}, s{sT2}, 16
        v_lshlrev_b32 v{t+1}, s{sRH}, v{t+1}
        v_lshl_add_u32 v{t+4}, v{t}, 1, s{sT2}
        v_sub_u32 v{t+4}, v{t+4}, v{t+1}
        s_xor_b32 s{sT3}, s{sRH}, 1
        v_add_u32 v{t+5}, s{sT3}, v{t+4}
        """)
        for r in range(4):
            a(f"v_subrev_u32 v{t+6}, {r}, v{t+2}")
            a(f"v_cmp_gt_u32 vcc, 8, v{t+6}")
            a(f"v_cndmask_b32 v{ACC+4+r}, v{t+3}, 0, vcc" if False else f"v_cndmask_b32_e64 v{ACC+4+r}, v{t+3}, 0, vcc")
            a(f"v_mov_b32 v{ACC+12+r}, v{ACC+4+r}")
            a(f"s_lshl_b32 s{sT3}, {r}, s{sRH}")
            for p in range(2):
                a(f"v_subrev_u32 v{t+6}, s{sT3}, v{t+4+p}")
                a(f"v_and_b32 v{t+6}, 0xfffffff1, v{t+6}")
                a(f"v_cmp_eq_u32 vcc, 0, v{t+6}")
                a(f"v_cndmask_b32_e64 v{ACC+8*p+r}, v{t+3}, 0, vcc")
        a.wait_lg_all()
        for p in range(2):
            S = ACC + 8 * p
            a(f"v_mfma_f32_16x16x16_bf16 {vr(S+4,4)}, {vr(Kb+2*p,2)}, {vr(Qb+2*p,2)}, {vr(S+4,4)}")
            a(f"v_mfma_f32_16x16x16_bf16 {vr(S,4)}, {vr(KP+2*p,2)}, {vr(Qb+2*p,2)}, {vr(S,4)}")
        CS = 0.25 * 1.4426950408889634
        a(f"s_mov_b32 s{sT3}, {f32(CS)}")
        M = t
        def xred(op):
            for sw in ("v_permlane16_swap_b32", "v_permlane32_swap_b32"):
                for p in range(2): a(f"v_mov_b32 v{M+2*p+1}, v{M+2*p}")
                for p in range(2): a(f"{sw} v{M+2*p}, v{M+2*p+1}")
                for p in range(2): a(f"{op} v{M+2*p}, v{M+2*p}, v{M+2*p+1}")
        for p in range(2):
            S = ACC + 8 * p; m = M + 2 * p
            a(f"v_max3_f32 v{m}, v{S}, v{S+1}, v{S+2}")
            a(f"v_max3_f32 v{m+1}, v{S+3}, v{S+4}, v{S+5}")
            a(f"v_max3_f32 v{m}, v{m}, v{S+6}, v{S+7}")
            a(f"v_max_f32 v{m}, v{m}, v{m+1}")
        xred("v_max_f32")
        for p in range(2): a(f"v_mul_f32 v{M+2*p}, {f32(-CS)}, v{M+2*p}")
        for p in range(2):
            for k in range(8): a(f"v_fma_f32 v{ACC+8*p+k}, v{ACC+8*p+k}, s{sT3}, v{M+2*p}")
        for k in range(16): a(f"v_exp_f32 v{ACC+k}, v{ACC+k}")
        PP = ACC + 16; O = ACC + 24
        for p in range(2):
            S = ACC + 8 * p; m = M + 2 * p
            for k in range(4): a(f"v_cvt_pk_bf16_f32 v{PP+4*p+k}, v{S+2*k}, v{S+2*k+1}")
        for p in range(2):
            a(f"v_mfma_f32_16x16x32_bf16 {vr(O+4*p,4)}, {vr(VV+4*p,4)}, {vr(PP+4*p,4)}, 0")
        for p in range(2):
            S = ACC + 8 * p; m = M + 2 * p
            a(f"v_pk_add_f32 {vr(S,2)}, {vr(S,2)}, {vr(S+2,2)}")
            a(f"v_pk_add_f32 {vr(S+4,2)}, {vr(S+4,2)}, {vr(S+6,2)}")
            a(f"v_pk_add_f32 {vr(S,2)}, {vr(S,2)}, {vr(S+4,2)}")
            a(f"v_add_f32 v{m}, v{S}, v{S+1}")
        xred("v_add_f32")
        for p in range(2): a(f"v_rcp_f32 v{M+2*p}, v{M+2*p}")
        for p in range(2):
            for h in range(2):
                a(f"v_pk_mul_f32 {vr(O+4*p+2*h,2)}, {vr(O+4*p+2*h,2)}, {vr(M+2*p,2)} op_sel_hi:[1,0]")
        for p in range(2):
            for h in range(2):
                a(f"v_cvt_pk_bf16_f32 v{Z2R+2*p+h}, v{O+4*p+2*h}, v{O+4*p+2*h+1}")
        a(f"""
        s_lshl_b32 s{sT2}, s{sM}, 1
        s_add_u32 s{sT2}, s{sT2}, s{sRH}
        s_lshl_b32 s{sT2}, s{sT2}, 3
        s_add_u32 s{sT2}, s{sT2}, s{sJ}
        s_lshl_b32 s{sT2}, s{sT2}, 2
        s_add_u32 s{sT2}, s{sT2}, s{sCG}
        s_lshl_b32 s{sT2}, s{sT2}, 10
        s_add_u32 s{sT2}, s{sT2}, {WS_O}
        """)
        a.vmem(f"buffer_store_dwordx4 {vr(Z2R,4)}, v{vL16}, {srd(SW)}, s{sT2} offen sc1", "o")

    def zload(self, n):
        a = self.a
        a(f"s_add_u32 s{sT0}, s{sZB}, {n*16384}")
        for e in range(2):
            a.vmem(f"buffer_load_dwordx4 {vr(XR+((n%16)*2+e)*4,4)}, v{vL16}, {srd(SW)}, s{sT0} offen offset:{e*1024} sc1", ("z", n))

    def addr_wsp(self):
        a = self.a
        t = FB + 40
        a(f"""
        v_and_b32 v{t}, 15, v{vLANE}
        v_lshrrev_b32 v{t+1}, 4, v{vLANE}
        s_lshl_b32 s{sT2}, s{sRH}, 2
        v_add_u32 v{t+1}, s{sT2}, v{t+1}
        v_lshrrev_b32 v{t+2}, 1, v{t}
        v_xor_b32 v{t+1}, v{t+1}, v{t+2}
        v_lshlrev_b32 v{t+1}, 4, v{t+1}
        v_lshl_add_u32 v8, v{t}, 7, v{t+1}
        s_lshl_b32 s{sT2}, s{sRH}, 12
        v_add_u32 v8, s{sT2}, v8
        v_xor_b32 v9, 4096, v8
        """)
        self.hi = False

    def bstage(self, s, i):
        a = self.a
        off = self.fix_hi(s, 2)
        def rd(q):
            for tf in range(4):
                a.ds(f"ds_read_b128 {vr(FB+((q%3)*4+tf)*4,4)}, v{8+(tf>>1)} offset:{off+q*8192+(tf&1)*2048}", ("f", q))
        rd(0); rd(1); rd(2)
        for q in range(4):
            n = 4 * i + q
            a.wait_vm(("z", n))
            a.wait_lg(("f", q))
            for e in range(2):
                for tf in range(4):
                    c = vr(ACC + (tf * 2 + e) * 4, 4)
                    a(f"v_mfma_f32_16x16x32_bf16 {c}, {vr(XR+((n%16)*2+e)*4,4)}, {vr(FB+((q%3)*4+tf)*4,4)}, {c if n else 0}")
            if q == 0: rd(3)
            if n + 16 < 32: self.zload(n + 16)

    def e_b(self):
        a = self.a
        a(f"""
        s_lshl_b32 s{sT2}, s{sWv}, 12
        s_add_u32 s{sT2}, s{sT2}, {AUX}
        v_add_u32 v{FB}, s{sT2}, v{vL16}
        v_xor_b32 v{FB+1}, 0x4000, v{FB}
        """)
        for k in range(4): a.ds(f"ds_write_b128 v{FB}, {vr(ACC+16+4*k,4)} offset:{k*1024}")
        a.wait_lg_all()
        a("s_barrier")
        for k in range(4): a.ds(f"ds_read_b128 {vr(FB+4+4*k,4)}, v{FB+1} offset:{k*1024}")
        a(f"""
        v_lshlrev_b32 v{FB+2}, 16, v{vBIAS}
        v_and_b32 v{FB+3}, s{sMSK}, v{vBIAS}
        s_lshl_b32 s{sT2}, s{sM}, 2
        s_lshl_b32 s{sT3}, s{sRH}, 1
        s_add_u32 s{sT2}, s{sT2}, s{sT3}
        s_mul_i32 s{sT2}, s{sT2}, 28
        s_lshl_b32 s{sT3}, s{sJ}, 2
        s_add_u32 s{sT2}, s{sT2}, s{sT3}
        s_add_u32 s{sT2}, s{sT2}, s{sCG}
        s_lshl_b32 s{sT2}, s{sT2}, 10
        s_add_u32 s{sT2}, s{sT2}, {WS_H}
        s_add_u32 s{sT3}, s{sT2}, {28*1024}
        """)
        for k in range(0, 16, 2):
            p = k // 8
            a(f"v_pk_add_f32 {vr(ACC+k,2)}, {vr(ACC+k,2)}, {vr(FB+2,2)} op_sel:[0,{p}] op_sel_hi:[1,{p}]")
        a.wait_lg_all()
        for k in range(0, 16, 2): a(f"v_pk_add_f32 {vr(ACC+k,2)}, {vr(ACC+k,2)}, {vr(FB+4+k,2)}")
        for k in range(0, 16, 2): a(f"v_pk_mul_f32 {vr(ACC+k,2)}, {vr(ACC+k,2)}, {vr(Z1R+k,2)}")
        for p in range(2):
            for k in range(4): a(f"v_cvt_pk_bf16_f32 v{Z2R+4*p+k}, v{ACC+8*p+2*k}, v{ACC+8*p+2*k+1}")
            a.vmem(f"buffer_store_dwordx4 {vr(Z2R+4*p,4)}, v{vL16}, {srd(SW)}, s{sT2+p} offen sc1", "h")

    def phase_c(self):
        a = self.a
        a.vm = []; a.lg = []
        a(f"""
        v_and_b32 v{Z1R}, 15, v{vLANE}
        v_lshlrev_b32 v{Z1R}, 11, v{Z1R}
        v_lshrrev_b32 v{Z1R+1}, 4, v{vLANE}
        v_lshl_add_u32 v{Z1R}, v{Z1R+1}, 3, v{Z1R}
        s_lshl_b32 s{sZ1}, s{sM}, 6
        s_lshr_b32 s{sT2}, s{sCG}, 1
        s_lshl_b32 s{sT2}, s{sT2}, 5
        s_add_u32 s{sZ1}, s{sZ1}, s{sT2}
        s_and_b32 s{sT2}, s{sCG}, 1
        s_add_u32 s{sZ1}, s{sZ1}, s{sT2}
        s_lshl_b32 s{sZ1}, s{sZ1}, 10
        s_lshl_b32 s{sT2}, s{sJ}, 7
        s_add_u32 s{sZ1}, s{sZ1}, s{sT2}
        s_lshl_b32 s{sT2}, s{sRH}, 6
        s_add_u32 s{sZ1}, s{sZ1}, s{sT2}
        """)
        for e in range(2):
            a.vmem(f"buffer_load_dwordx2 {vr(Z1R+2+2*e,2)}, v{Z1R}, {srd(SX)}, s{sZ1} offen offset:{e*32}", "xf")
        self.pollm_issue(WS_F4)
        self.addr_perm("c")
        a(f"""
        s_lshl_b32 s{sZB}, s{sM}, 2
        s_add_u32 s{sZB}, s{sZB}, s{sCG}
        s_mul_i32 s{sZB}, s{sZB}, 28
        s_add_u32 s{sZB}, s{sZB}, s{sRH}
        s_lshl_b32 s{sZB}, s{sZB}, 10
        s_add_u32 s{sZB}, s{sZB}, {WS_H}
        s_lshl_b32 s{sZ2}, s{sM}, 3
        s_add_u32 s{sZ2}, s{sZ2}, s{sJ}
        s_lshl_b32 s{sZ2}, s{sZ2}, 2
        s_add_u32 s{sZ2}, s{sZ2}, s{sCG}
        s_lshl_b32 s{sZ2}, s{sZ2}, 1
        s_add_u32 s{sZ2}, s{sZ2}, s{sRH}
        s_lshl_b32 s{sZ2}, s{sZ2}, 10
        s_add_u32 s{sZ2}, s{sZ2}, {WS_S}
        s_barrier
        """)
        self.poll_check(self.poll_ld, vP, "poll")
        self.stamp("c_poll")
        for n in range(14):
            if n % 2 == 0: a(f"s_add_u32 s{sT0}, s{sZB}, {n*2048}")
            a.vmem(f"buffer_load_dwordx4 {vr(XR+4*n,4)}, v{vL16}, {srd(SW)}, s{sT0} offen offset:{(n%2)*2048} sc1", ("h", n))
        a.vmem(f"buffer_load_dwordx4 {vr(Z1R+8,4)}, v{vL16}, {srd(SW)}, s{sZ2} offen sc1", "s")
        def rd(n):
            s = 24 + n // 4
            off = self.fix_hi(s, 4)
            for cf in range(4):
                for h in range(2):
                    a.ds(f"ds_read_b64_tr_b16 {vr(FB+((n%3)*4+cf)*4+2*h,2)}, v{8+cf} offset:{off+(n%4)*8192+h*2048}", ("f", n))
        rd(0); rd(1)
        for n in range(14):
            a.wait_vm(("h", n))
            a.wait_lg(("f", n))
            for cf in range(4):
                c = vr(ACC + 4 * cf, 4)
                a(f"v_mfma_f32_16x16x32_bf16 {c}, {vr(FB+((n%3)*4+cf)*4,4)}, {vr(XR+4*n,4)}, {c if n else 0}")
            if n + 2 < 14: rd(n + 2)
        a(f"""
        s_lshl_b32 s{sT2}, s{sWv}, 11
        s_add_u32 s{sT2}, s{sT2}, {AUX}
        v_add_u32 v{FB}, s{sT2}, v{vL16}
        v_xor_b32 v{FB+1}, 0x2000, v{FB}
        """)
        for k in range(2): a.ds(f"ds_write_b128 v{FB}, {vr(ACC+8+4*k,4)} offset:{k*1024}")
        a.wait_lg_all()
        a("s_barrier")
        for k in range(2): a.ds(f"ds_read_b128 {vr(FB+4+4*k,4)}, v{FB+1} offset:{k*1024}")
        a.wait_vm("s")
        SS = FB + 12; XX = FB + 20; T = FB + 28
        for k in range(4):
            a(f"v_lshlrev_b32 v{SS+2*k}, 16, v{Z1R+8+k}\nv_and_b32 v{SS+2*k+1}, s{sMSK}, v{Z1R+8+k}")
            a(f"v_lshlrev_b32 v{XX+2*k}, 16, v{Z1R+2+k}\nv_and_b32 v{XX+2*k+1}, s{sMSK}, v{Z1R+2+k}")
        a.wait_lg_all()
        for k in range(0, 8, 2): a(f"v_pk_add_f32 {vr(ACC+k,2)}, {vr(ACC+k,2)}, {vr(FB+4+k,2)}")
        for k in range(8): a(f"v_mul_f32 v{T+k}, {f32(-1.4426950408889634)}, v{ACC+k}")
        for k in range(8): a(f"v_exp_f32 v{T+k}, v{T+k}")
        for k in range(0, 8, 2): a(f"v_pk_add_f32 {vr(T+k,2)}, {vr(T+k,2)}, 1.0 op_sel_hi:[1,0]")
        for k in range(8): a(f"v_rcp_f32 v{T+k}, v{T+k}")
        for k in range(0, 8, 2): a(f"v_pk_mul_f32 {vr(T+k,2)}, {vr(T+k,2)}, {vr(ACC+k,2)}")
        for k in range(0, 8, 2): a(f"v_pk_fma_f32 {vr(T+k,2)}, {vr(T+k,2)}, {vr(SS+k,2)}, {vr(XX+k,2)}")
        for k in range(4): a(f"v_cvt_pk_bf16_f32 v{ACC+k}, v{T+2*k}, v{T+2*k+1}")
        for e in range(2):
            a.vmem(f"buffer_store_dwordx2 {vr(ACC+2*e,2)}, v{Z1R}, {srd(SOUT)}, s{sZ1} offen offset:{e*32}", "out")
        if cfg.ts:
            a.wait_vm_all()
            self.stamp("end")
            a(f"s_memtime s[74:75]\ns_waitcnt lgkmcnt(0)\ns_sub_u32 s{sTS+15}, s74, s{sTS+14}")
            a(f"s_lshl_b32 s{sT2}, s2, 3\ns_add_u32 s{sT2}, s{sT2}, s{sWv}\ns_lshl_b32 s{sT2}, s{sT2}, 6\ns_add_u32 s{sT2}, s{sT2}, {WS_TS}")
            for k in range(16): a(f"v_mov_b32 v{FB+k}, s{sTS+k}")
            a("s_mov_b64 exec, 1")
            for k in range(4): a(f"buffer_store_dwordx4 {vr(FB+4*k,4)}, off, {srd(SW)}, s{sT2} offset:{16*k}")

    def prog_z(self):
        a = self.a
        self.stages = [("z2", i) for i in range(4)] + [("z1", i) for i in range(4)] + [("qkv", i) for i in range(8)] + \
                      [("wsp", i) for i in range(8)] + [("wout", i) for i in range(4)]
        self.issue_stage(0); self.issue_stage(1)
        a(f"""
        v_and_b32 v18, 15, v{vLANE}
        v_lshlrev_b32 v18, 2, v18
        s_lshl_b32 s{sT2}, s{sM}, 7
        s_lshl_b32 s{sT3}, s{sRH}, 6
        s_add_u32 s{sT2}, s{sT2}, s{sT3}
        """)
        a.vmem(f"buffer_load_dword v{vBIAS}, v18, {srd(SBS)}, s{sT2} offen", "bias")
        self.layernorm_x()
        self.stamp("ln")
        self.addr_nat("z")
        for s in range(4):
            self.begin_stage(s, extra=(2,) if s == 0 else ())
            if s == 2: self.issue_nonce()
            self.zstage(s, s, Z2R, False)
        self.stamp("z2")
        for s in range(4, 8):
            self.begin_stage(s)
            if s == 4:
                self.e_z2a(); self.stamp("z2a")
            if s == 7: self.stats_issue()
            self.zstage(s, s - 4, Z1R, True)
        for s in range(8, 16):
            self.begin_stage(s)
            if s == 8:
                self.stamp("z1")
                self.gelu(Z1R, 16, FB)
                self.stats_check()
                self.stamp("stats")
                self.addr_nat("q")
            if s == 9: self.e_z2b()
            if s == 12: self.flag2()
            if s == 15: self.poll2_issue()
            self.qstage(s, s - 8)
        self.stamp("qkv")
        self.attn_pre()
        self.begin_stage(16)
        self.poll_check(self.poll_ld, vP, "poll")
        self.stamp("poll2")
        a(f"""
        s_lshl_b32 s{sZB}, s{sJ}, 19
        s_lshl_b32 s{sT2}, s{sWv}, 11
        s_add_u32 s{sZB}, s{sZB}, s{sT2}
        """)
        for n in range(cfg.npre): self.zload(n)
        self.attn()
        for n in range(cfg.npre, 16): self.zload(n)
        self.stamp("attn")
        self.addr_wsp()
        for s in range(16, 24):
            if s > 16: self.begin_stage(s)
            if s == cfg.f3stage: self.flag_mjw(WS_F3, "o")
            self.bstage(s, s - 16)
        self.stamp("B")
        a.wait_lg_all()
        a("s_barrier")
        self.issue_stage(27)
        self.e_b()
        self.flag_mjw(WS_F4, "h")
        self.stamp("eB")
        a.wait_vm_all()

    def prog_s(self):
        a = self.a
        self.stages = [("qkv", i) for i in range(8)] + [("wo", i) for i in range(16)] + [("wout", i) for i in range(4)]
        self.issue_stage(0); self.issue_stage(1)
        self.layernorm_x()
        self.addr_nat("q")
        for s in range(8):
            self.begin_stage(s, extra=(2,) if s == 0 else ())
            if s == 4: self.issue_nonce()
            self.qstage(s, s)
        self.attn_pre()
        self.begin_stage(8)
        self.attn()
        self.get_nonce()
        self.flag_mjw(WS_F3, "o")
        self.pollm_issue(WS_F3)
        self.poll_check(self.poll_ld, vP, "poll")
        a(f"""
        s_lshl_b32 s{sZB}, s{sM}, 1
        s_add_u32 s{sZB}, s{sZB}, s{sRH}
        s_lshl_b32 s{sZB}, s{sZB}, 15
        s_add_u32 s{sZB}, s{sZB}, {WS_O}
        """)
        for ks in range(16):
            a(f"s_add_u32 s{sT0}, s{sZB}, {ks*2048}")
            for p in range(2):
                a.vmem(f"buffer_load_dwordx4 {vr(X(p,ks),4)}, v{vL16}, {srd(SW)}, s{sT0} offen offset:{p*1024} sc1", "of")
        self.addr_perm("s")
        a(f"""
        s_lshl_b32 s{sZ2}, s{sM}, 3
        s_lshr_b32 s{sT2}, s{sCG}, 1
        s_add_u32 s{sZ2}, s{sZ2}, s{sT2}
        s_lshl_b32 s{sZ2}, s{sZ2}, 1
        s_add_u32 s{sZ2}, s{sZ2}, s{sRH}
        s_lshl_b32 s{sZ2}, s{sZ2}, 2
        s_and_b32 s{sT2}, s{sCG}, 1
        s_add_u32 s{sZ2}, s{sZ2}, s{sT2}
        s_lshl_b32 s{sZ2}, s{sZ2}, 10
        s_add_u32 s{sZ2}, s{sZ2}, {WS_S}
        """)
        a.wait_vm("of")
        for ks in range(16):
            a(f"v_swap_b32 v{X(0,ks)+2}, v{X(1,ks)}\nv_swap_b32 v{X(0,ks)+3}, v{X(1,ks)+1}")
        for s in range(8, 24):
            if s > 8: self.begin_stage(s)
            pp, ii = divmod(s - 8, 4)
            self.zstage(s, ii, ACC, True, perm=True)
            if ii == 3:
                a(f"s_add_u32 s{sT2}, s{sZ2}, {pp*16384}")
                for p in range(2):
                    for k in range(4): a(f"v_cvt_pk_bf16_f32 v{Z2R+4*p+k}, v{ACC+8*p+2*k}, v{ACC+8*p+2*k+1}")
                    a.vmem(f"buffer_store_dwordx4 {vr(Z2R+4*p,4)}, v{vL16}, {srd(SW)}, s{sT2} offen offset:{p*2048} sc1", "s")
        a.wait_lg_all()
        a("s_barrier")
        self.issue_stage(27)
        self.flag_mjw(WS_F4, "s")
        a.wait_vm_all()

    def build(self):
        a = self.a
        a(f"{KN}:")
        self.prologue()
        a(f"s_cmp_eq_u32 s{sJ}, 7\ns_cbranch_scc1 L_progs")
        vm0 = list(a.vm); nts0 = self.nts
        self.prog_z()
        a("L_phasec:")
        self.phase_c()
        a("L_exit:\ns_endpgm")
        a("L_progs:")
        a.vm = vm0; a.lg = []
        ts = cfg.ts; cfg.ts = False
        self.prog_s()
        cfg.ts = ts
        a("s_branch L_phasec")
        a("L_end:")
        body = a.finish()
        head = open("cdna_kernels/" + NAME + ".s.ref").read().split("; @launch")[0]
        txt = head + f"; @launch grid=(256,1,1) block=(512,1,1) lds={LDS_TOTAL}\n"
        txt += f'.amdgcn_target "amdgcn-amd-amdhsa--gfx950"\n.text\n.globl {KN}\n.p2align 8\n.type {KN},@function\n'
        txt += body
        txt += f""".section .rodata,"a"
.p2align 6
.amdhsa_kernel {KN}
  .amdhsa_next_free_vgpr 256
  .amdhsa_next_free_sgpr 102
  .amdhsa_accum_offset 256
  .amdhsa_group_segment_fixed_size 0
  .amdhsa_kernarg_size 88
  .amdhsa_user_sgpr_count 2
  .amdhsa_user_sgpr_kernarg_segment_ptr 1
  .amdhsa_system_sgpr_workgroup_id_x 1
.end_amdhsa_kernel
"""
        return txt

if __name__ == "__main__":
    out = sys.argv[1]
    for kv in sys.argv[2:]:
        k, v = kv.split("=")
        setattr(cfg, k, eval(v))
    g = Gen()
    txt = g.build()
    if cfg.ts: txt = txt.replace(".amdgcn_target", "; stamps: " + ",".join(g.names) + "\n.amdgcn_target", 1)
    open(out, "w").write(txt)
    print("written", out, "lines", txt.count("\n"), "auto nops", g.a.nnop)
```

```python
import re

TRANS = ("v_exp_f32", "v_log_f32", "v_rcp_f32", "v_rsq_f32", "v_sqrt_f32", "v_sin_f32", "v_cos_f32")

def regs_of(tok):
    tok = tok.strip()
    tok = tok.lstrip("-")
    m = re.fullmatch(r"abs\((.*)\)|\|(.*)\|", tok)
    if m:
        tok = m.group(1) or m.group(2)
    m = re.fullmatch(r"([vsa])(\d+)", tok)
    if m:
        return {(m.group(1), int(m.group(2)))}
    m = re.fullmatch(r"([vsa])\[(\d+):(\d+)\]", tok)
    if m:
        return {(m.group(1), i) for i in range(int(m.group(2)), int(m.group(3)) + 1)}
    if tok in ("vcc", "exec", "m0", "scc"):
        return {("x", tok)}
    if tok in ("vcc_lo", "vcc_hi"):
        return {("x", "vcc")}
    if tok in ("exec_lo", "exec_hi"):
        return {("x", "exec")}
    return set()

class Ins:
    def __init__(self, text):
        self.text = text
        t = text.split(";")[0].strip()
        self.label = t.endswith(":")
        self.directive = t.startswith(".") or t == ""
        self.op = ""
        self.dst = set(); self.src = set()
        self.A = set(); self.B = set(); self.C = set(); self.data = set()
        self.kind = "none"
        self.states = 0
        if self.label or self.directive:
            return
        parts = t.split(None, 1)
        op = self.op = parts[0]
        rest = parts[1] if len(parts) > 1 else ""
        ops = []
        depth = 0; cur = ""
        for ch in rest:
            if ch in "[(": depth += 1
            if ch in "])": depth -= 1
            if ch == "," and depth == 0:
                ops.append(cur); cur = ""
            else:
                cur += ch
        ops.append(cur)
        ops = [o.strip() for o in ops]
        mods = ""
        if ops:
            last = ops[-1].split(None, 1)
            if len(last) > 1:
                ops[-1] = last[0]; mods = last[1]
        self.mods = mods
        R = [regs_of(o) for o in ops]
        self.states = 1
        self.dpp = ("_dpp" in op) or any(k in mods for k in ("row_ror", "row_shr", "quad_perm", "row_mirror", "row_half_mirror", "row_bcast", "row_shl"))
        if op == "s_nop":
            self.kind = "nop"; self.states = int(ops[0], 0) + 1
        elif op.startswith("v_mfma"):
            self.kind = "mfma"
            self.dst = R[0]; self.A = R[1]; self.B = R[2]; self.C = R[3]
            self.src = R[1] | R[2] | R[3]
            self.passes = 8 if "32x32" in op else 4
        elif op.startswith("v_"):
            self.kind = "valu"
            self.dst = set(R[0]); self.src = set().union(*R[1:]) if len(R) > 1 else set()
            if op.startswith(("v_fmac", "v_dot2c", "v_pk_fmac")):
                self.src |= R[0]
            if op.startswith(("v_swap", "v_permlane")):
                self.dst = R[0] | R[1]; self.src = R[0] | R[1]
            if op.startswith(("v_add_co", "v_sub_co", "v_addc_co")):
                self.dst = R[0] | R[1]; self.src = set().union(*R[2:])
            if op.startswith("v_cndmask") and len(ops) == 3:
                self.src |= {("x", "vcc")}
            if self.dpp:
                self.src |= R[0]
        elif op.startswith("ds_"):
            self.kind = "ds"
            if op.startswith(("ds_read", "ds_bpermute", "ds_permute", "ds_swizzle")):
                self.dst = R[0]; self.src = set().union(*R[1:])
            else:
                self.src = set().union(*R)
        elif op.startswith(("buffer_", "global_")):
            self.kind = "vmem"
            self.lds = bool(re.search(r"\blds\b", mods)) or "load_lds" in op
            if "load" in op and not self.lds:
                self.dst = R[0]; self.src = set().union(*R[1:])
            else:
                self.src = set().union(*R) if R else set()
                if "store" in op and ("x4" in op or "x3" in op):
                    self.data = R[0] if op.startswith("buffer_") else R[1]
            if self.lds:
                self.src |= {("x", "m0")}
        elif op.startswith("s_"):
            self.kind = "salu"
            if op.startswith(("s_cmp", "s_cbranch", "s_branch", "s_waitcnt", "s_barrier", "s_sleep", "s_setprio", "s_endpgm")):
                self.src = set().union(*R) if R else set()
            else:
                self.dst = set(R[0]) if R else set()
                self.src = set().union(*R[1:]) if len(R) > 1 else set()
                if "saveexec" in op:
                    self.dst |= {("x", "exec")}
        else:
            raise ValueError("unknown instruction: " + text)

def vset(s): return {r for r in s if r[0] in "va"}
def sset(s): return {r for r in s if r[0] == "s" or r == ("x", "vcc")}

def need_states(p, c):
    n = 0
    if p.kind == "valu":
        pv = vset(p.dst); ps = sset(p.dst)
        isdot = p.op.startswith("v_dot2")
        if c.kind == "mfma" and pv & c.src: n = max(n, 3 if isdot else 2)
        if c.kind == "valu":
            if c.op.startswith(("v_readfirstlane", "v_readlane")) and pv & c.src: n = max(n, 1)
            if c.dpp and pv & c.src: n = max(n, 2)
            if c.op.startswith("v_permlane") and pv & c.src: n = max(n, 2)
            if ps & c.src: n = max(n, 4 if c.op.startswith(("v_readlane", "v_writelane")) else 2)
        if p.op.split("_e32")[0] in TRANS and c.kind in ("valu", "mfma", "vmem", "ds") and pv & c.src: n = max(n, 1)
        if "sdwa" in p.op and c.kind == "valu" and pv & (c.src | c.dst): n = max(n, 1)
        if isdot and c.kind in ("valu", "vmem", "ds") and pv & (c.src | c.dst):
            if not (c.op == p.op and pv == vset(c.dst)): n = max(n, 3)
        if c.kind == "vmem" and ps & c.src: n = max(n, 5)
        if c.kind == "salu" and ps & c.src and not c.op.startswith("s_cbranch"): n = max(n, 1)
    if p.kind == "mfma":
        ps = p.passes
        big = {4: 8, 8: 12}[ps]; ovl = {4: 6, 8: 10}[ps]; war = {4: 3, 8: 7}[ps]
        if c.kind == "mfma":
            if p.dst & (c.A | c.B): n = max(n, big)
            if p.dst & c.C and not (p.dst == c.C and c.passes == ps): n = max(n, ovl)
            if p.dst & c.dst and not (p.dst == c.C): n = max(n, ovl)
        if c.kind in ("valu", "vmem", "ds") and p.dst & (c.src | c.dst): n = max(n, big)
        if c.kind == "valu" and p.C & c.dst: n = max(n, war)
    if p.kind == "vmem" and p.data:
        if c.kind == "valu" and p.data & c.dst: n = max(n, 2)
        elif p.data & c.dst: n = max(n, 1)
    if p.kind == "salu" and ("x", "m0") in p.dst and c.kind == "vmem" and c.lds: n = max(n, 1)
    return n

class Asm:
    def __init__(self):
        self.L = []
        self.vm = []
        self.lg = []
        self.uid = 0
    def __call__(self, text):
        for line in text.split("\n"):
            if line.strip():
                self.L.append(line.strip())
    def lab(self, base):
        self.uid += 1
        return f"L_{base}_{self.uid}"
    def vmem(self, text, tag):
        self(text); self.vm.append(tag)
        assert len(self.vm) <= 63, ("too many vmem outstanding", len(self.vm))
    def vmem_extra(self, text):
        self(text)
    def wait_vm(self, *tags):
        idx = [i for i, t in enumerate(self.vm) if t in tags]
        if not idx:
            return
        n = len(self.vm) - 1 - max(idx)
        self(f"s_waitcnt vmcnt({n})")
        self.vm = self.vm[max(idx) + 1:]
    def wait_vm_all(self):
        self("s_waitcnt vmcnt(0)"); self.vm = []
    def ds(self, text, tag="ds"):
        self(text); self.lg.append(tag)
    def wait_lg(self, *tags):
        idx = [i for i, t in enumerate(self.lg) if t in tags]
        if not idx:
            return
        n = len(self.lg) - 1 - max(idx)
        n = min(n, 15)
        self(f"s_waitcnt lgkmcnt({n})")
        self.lg = self.lg[len(self.lg) - n:] if n else []
    def wait_lg_all(self):
        self("s_waitcnt lgkmcnt(0)"); self.lg = []
    def finish(self):
        out = []
        win = []
        nnop = 0
        for text in self.L:
            c = Ins(text)
            if c.label:
                name = text.split(":")[0].strip()
                idx = [i for i, p in enumerate(win) if p.op.startswith("s_cbranch") and p.text.split()[-1] == name]
                if idx:
                    for p in win[idx[0] + 1:]: p.states = 0
            if c.label or c.directive:
                out.append(text); continue
            dist = 0; need = 0
            for p in reversed(win):
                r = need_states(p, c)
                if r - dist > need: need = r - dist
                dist += p.states
                if dist >= 20: break
            while need > 0:
                k = min(need, 16)
                nop = Ins(f"s_nop {k-1}")
                out.append(" " + nop.text); win.append(nop); need -= k; nnop += 1
            out.append(" " + text); win.append(c)
            if len(win) > 80: win = win[-60:]
        self.nnop = nnop
        return "\n".join(out) + "\n"

def vr(a, n=1):
    return f"v{a}" if n == 1 else f"v[{a}:{a+n-1}]"
def sr(a, n=1):
    return f"s{a}" if n == 1 else f"s[{a}:{a+n-1}]"
```

```python
import sys, struct
from collections import deque
from asmlib import *

NAME = "recurrent_scan__sliding_local_dilated__mixer_gmlp__prompt"
KN = NAME + "_kernel"

class Cfg:
    ts = False
    tsel = None
    tsclk = 0
    mapmode = 2
    spin_limit = 50000
    rotA = 1
    rotB = 1
    hpf = 1
    nv_q = 4
    nv_z = 4
    nv_b = 2
cfg = Cfg()

def f32(x): return "0x%08x" % struct.unpack("<I", struct.pack("<f", x))[0]

WS_Z2N = 0; WS_O = 0x400000; WS_H = 0x800000; WS_STATS = 0xC00000
WS_F2 = 0xC40000; WS_F3 = 0xC42000; WS_F4 = 0xC44000; WS_F5 = 0xC46000; WS_TS = 0xD00000; WS_P = 0x1000000
WS_SIZE = 0x10000000
SLOT = 32768
AUX = 131072; HALO = AUX; KVX = AUX + 16384; STAT = KVX + 8192; COEF = STAT + 2048; AB = COEF + 4096
LDS_TOTAL = 163840
SX, SWQ, SWO, SWI, SWS, SBS, SWT, SOUT, SDBG, SW = 8, 12, 16, 20, 24, 28, 32, 36, 40, 44
sM, sJ, sWv, sRH, sCG, sNON, sPB = 48, 49, 50, 51, 52, 53, 54
sWIa, sWIb, sQKa, sSPF, sWT, sT0, sT1, sT2, sT3 = 55, 56, 57, 58, 59, 60, 61, 62, 63
sPO = 3; sQKb = 73
sGC = 64
sONE = 66; sMSK = 67; sZB = 68; sSPO = 69; sCNT = 70; sCUR = 71; sC2 = 72; sRA = 73
sRB = 78; sXO = 79; sZC = 80; sMJW = 81
sTS = 84
NTS = 16
def srd(b): return f"s[{b}:{b+3}]"
vLANE, vL16, vWI, vWQ, vWS, vWT, vBIAS = 1, 2, 3, 4, 5, 6, 7
vA0 = 8; vP = 12
Z2R = 16; Z1R = 32; FB = 48; TT = 80; ACC = 96; XR = 128
def X(p, ks): return XR + (p * 16 + ks) * 4
MF = "v_mfma_f32_16x16x32_bf16"
DPPM = "row_mask:0xf bank_mask:0xf"

class Step:
    def __init__(self, stage, reads, mfmas, pre=None, post=None, setup=None, nv=0, nd=1, il=1):
        self.stage = stage; self.reads = reads; self.mfmas = mfmas
        self.pre = pre; self.post = post; self.setup = setup; self.nv = nv; self.nd = nd
        self.started = False; self.il = il

class Gen:
    def __init__(self):
        self.a = Asm()
        self.nts = 0; self.names = []; self.pend = None; self.prev = None; self.halo_done = False
        self.win = 0
        self.side = deque(); self.blocked = False; self.gate = None
        self.dq = deque()

    def stamp(self, name, auto=False):
        if not cfg.ts: return
        if name != "end":
            if cfg.tsel is None:
                if auto: return
            elif name not in cfg.tsel or not self.record: return
        a = self.a
        assert self.nts < NTS
        if cfg.tsel is None or name == "end":
            a.wait_lg_all()
            a(f"s_memrealtime s[74:75]\ns_waitcnt lgkmcnt(0)\ns_mov_b32 s{sTS+self.nts}, s74")
        else:
            if self.pend is not None: a(f"s_mov_b32 s{self.pend[0]}, s{self.pend[1]}")
            pr = 74 if (self.nts & 1) else 82
            a(f"{'s_memtime' if cfg.tsclk else 's_memrealtime'} s[{pr}:{pr+1}] ; stamp {name}")
            self.pend2 = (sTS + self.nts, pr)
            self.pend, self.pend2, self.prev = self.prev, None, (sTS + self.nts, pr)
        if self.record: self.names.append(name)
        self.nts += 1

    def pump_v(self, n):
        while n > 0 and self.side and not self.blocked:
            try:
                r = next(self.side[0])
            except StopIteration:
                self.side.popleft(); continue
            if r == "B": self.blocked = True
            elif isinstance(r, Step):
                if not r.started: self.gate = r; self.blocked = True
            else: n -= 1
    def pump_d(self, n):
        while n > 0 and self.dq:
            self.dq.popleft()[1](); n -= 1
    def flush_d(self, tag=None):
        if tag is None:
            self.pump_d(len(self.dq)); return
        idx = [i for i, (t, _) in enumerate(self.dq) if t == tag]
        if idx: self.pump_d(max(idx) + 1)
    def flush_v(self):
        while self.side:
            if self.blocked:
                if self.gate is not None: self.gate = None; self.blocked = False
                else: self.barrier()
            self.pump_v(1000)
    def barrier(self):
        self.a.wait_lg_all()
        self.a("s_barrier")
        if self.gate is None: self.blocked = False

    def q_dma(self, srdb, voff, sbase, goff, lds, tag, pre=None):
        def f():
            a = self.a
            if pre: a(pre)
            a(f"s_add_u32 m0, s{sPB}, {lds}")
            a(f"s_add_u32 s{sT0}, s{sbase}, {goff}")
            a.vmem(f"buffer_load_dwordx4 v{voff}, {srd(srdb)}, s{sT0} offen lds", tag)
        self.dq.append((tag, f))

    def slot(self, s):
        return self.slots[s]

    def rot(self, sreg, i, mask, stride, base):
        return f"s_add_u32 s{sCUR}, s{sreg}, {i}\ns_and_b32 s{sCUR}, s{sCUR}, {mask}\ns_mul_i32 s{sCUR}, s{sCUR}, {stride}\ns_add_u32 s{sCUR}, s{sCUR}, s{base}"

    def queue_stage(self, s, twin=0):
        if s >= len(self.stages): return
        kind, i = self.stages[s]
        base = self.slot(s); tag = ("st", s)
        if twin:
            assert kind == "z2"
            pre = f"s_xor_b32 s{sCUR}, s{sPO}, {(i>>1)*128}\ns_add_u32 s{sCUR}, s{sCUR}, s{sWIb if i & 1 else sWIa}"
            for q in range(4):
                for t in (0, twin):
                    self.q_dma(SWI, vWI, sCUR, (q * 64 * 3584 + 1792 + t * 32 * 3584) & 0xffffffff, base + q * 8192 + t * 4096, tag, pre if (q == 0 and t == 0) else None)
        elif kind == "z2":
            pre = f"s_xor_b32 s{sCUR}, s{sPO}, {(i>>1)*128}\ns_add_u32 s{sCUR}, s{sCUR}, s{sWIb if i & 1 else sWIa}"
            for q in range(4):
                self.q_dma(SWI, vWI, sCUR, q * 64 * 3584 + 1792, base + q * 8192, tag, pre if q == 0 else None)
        elif kind == "z1":
            for q in range(4):
                self.q_dma(SWI, vWI, sWIb if i & 1 else sWIa, q * 64 * 3584 + (i >> 1) * 128, base + q * 8192, tag)
        elif kind == "qkv":
            for pn in range(3):
                self.q_dma(SWQ, vWQ, sQKb if i >= 4 else sQKa, (i & 3) * 64 * 3072 + pn * 1024, base + pn * 8192, tag)
        elif kind in ("wspF", "wspO"):
            pre = self.rot(sRB, i, 3, 512, sSPF if kind == "wspF" else sSPO)
            for q in range(4):
                self.q_dma(SWS, vWS, sCUR, q * 128, base + q * 8192, tag, pre if q == 0 else None)
        elif kind in ("wout", "wo"):
            for q in range(2 if (kind == "wout" and i == 3) else 4):
                self.q_dma(SWT if kind == "wout" else SWO, vWT, sWT, (i * 256 + q * 64) * 1024, base + q * 8192, tag)

    def boundary(self, s):
        self.flush_d(("st", s))
        self.stamp(f"a{s}", True)
        self.a.wait_vm(("st", s))
        self.stamp(f"w{s}", True)
        self.barrier()
        self.stamp(f"b{s}", True)
        for t in self.unlock.get(s, ()): self.queue_stage(t)

    def window(self, s, nregs):
        want = self.slot(s) & ~0xFFFF
        if want != self.win:
            d = (want - self.win) & 0xFFFFFFFF
            for k in range(nregs): self.a(f"v_add_u32 v{vA0+k}, 0x{d:x}, v{vA0+k}")
            self.win = want
        return self.slot(s) & 0xFFFF

    def run_steps(self, steps):
        a = self.a
        def prep(n):
            st = steps[n]
            if st.stage != self.cur_stage:
                self.boundary(st.stage); self.cur_stage = st.stage
            if st.setup: st.setup()
            return deque(st.reads(FB + 16 * (n & 1)))
        for r, f in prep(0): a.ds(r, ("f", 0, f))
        for n, st in enumerate(steps):
            self.cur_step = st; st.started = True
            if self.gate is st: self.gate = None; self.blocked = False
            R = prep(n + 1) if n + 1 < len(steps) else deque()
            il = steps[n + 1].il if n + 1 < len(steps) else 0
            if st.pre: st.pre()
            ms = st.mfmas(FB + 16 * (n & 1))
            dleft = st.nd
            per = max(1, len(ms) // max(1, st.nd))
            for k, (m, f) in enumerate(ms):
                a.wait_lg(("f", n, f))
                a(m)
                for _ in range(il):
                    if R:
                        r, g = R.popleft(); a.ds(r, ("f", n + 1, g))
                if dleft and (k % per == per - 1):
                    self.pump_d(1); dleft -= 1
                self.pump_v(st.nv)
            while R:
                r, g = R.popleft(); a.ds(r, ("f", n + 1, g))
            if st.post: st.post()

    def spin(self, load_text, cond, tag):
        a = self.a
        ok = a.lab("ok"); lp = a.lab("spin")
        a.wait_vm(tag)
        a(cond)
        a(f"s_cbranch_vccz {ok}")
        a(f"s_mov_b32 s{sCNT}, {cfg.spin_limit}")
        a(f"{lp}:")
        a(f"s_sleep {cfg.sleep if self.record else cfg.sleep_h}")
        a(load_text)
        a("s_waitcnt vmcnt(0)")
        a(f"s_sub_u32 s{sCNT}, s{sCNT}, 1")
        a(f"s_cbranch_scc1 {ok}")
        a(cond)
        a(f"s_cbranch_vccnz {lp}")
        a(f"{ok}:")
    def poll_check(self):
        self.spin(self.poll_ld, f"v_cmp_ne_u32 vcc, s{sNON}, v{vP}", "poll")
    def issue_nonce(self):
        self.a.vmem(f"buffer_load_dwordx2 v[{vP}:{vP+1}], off, {srd(SDBG)}, 0 sc1", "non")
    def get_nonce(self):
        self.spin(f"buffer_load_dwordx2 v[{vP}:{vP+1}], off, {srd(SDBG)}, 0 sc1", f"v_cmp_eq_u32 vcc, 0, v{vP+1}", "non")
        self.a(f"v_readfirstlane_b32 s{sNON}, v{vP}\nv_mov_b32 v0, v{vP}")
    def flag_store(self, tag, addr_lines):
        a = self.a
        a(addr_lines)
        a.wait_vm(tag)
        a("s_mov_b64 exec, 1")
        a.vmem(f"buffer_store_dword v0, off, {srd(SW)}, s{sT1} sc1", "flag")
        a("s_mov_b64 exec, -1")
    def flag_mjw(self, base, tag, xor=0):
        x = f"s_xor_b32 s{sT1}, s{sMJW}, {xor}\n" if xor else f"s_mov_b32 s{sT1}, s{sMJW}\n"
        self.flag_store(tag, x + f"s_lshl_b32 s{sT1}, s{sT1}, 2\ns_add_u32 s{sT1}, s{sT1}, {base}")
    def poll_issue(self, addr_lines, lane_lines):
        a = self.a
        a(addr_lines); a(lane_lines)
        self.poll_ld = f"buffer_load_dword v{vP}, v{vP+1}, {srd(SW)}, s{sC2} offen sc1"
        a.vmem(self.poll_ld, "poll")
    def pollm_issue(self, base, nflags=64):
        lane = f"v_lshlrev_b32 v{vP+1}, 2, v{vLANE}" if nflags == 64 else f"v_min_u32 v{vP+1}, {nflags-1}, v{vLANE}\nv_lshlrev_b32 v{vP+1}, 2, v{vP+1}"
        self.poll_issue(f"s_lshl_b32 s{sC2}, s{sM}, 8\ns_add_u32 s{sC2}, s{sC2}, {base}", lane)

    def prologue(self):
        a = self.a
        a(f"""
        s_cmp_ge_u32 s2, 256
        s_cbranch_scc1 L_exit
        s_load_dwordx2 s[{SX}:{SX+1}], s[0:1], 0
        s_load_dwordx2 s[{SWI}:{SWI+1}], s[0:1], 32
        s_load_dwordx2 s[{SDBG}:{SDBG+1}], s[0:1], 72
        """)
        self.code_prefetch()
        if cfg.ts:
            a(f"s_memrealtime s[{sTS}:{sTS+1}]\ns_memtime s[100:101]")
            self.nts = 1; self.names = ["start"]
        a(f"""
        v_lshrrev_b32 v2, 6, v0
        v_and_b32 v{vLANE}, 63, v0
        v_readfirstlane_b32 s{sWv}, v2
        s_and_b32 s{sT0}, s2, 7
        s_lshr_b32 s{sT1}, s2, 3
        """)
        if cfg.mapmode == 2:
            a(f"""
            s_lshr_b32 s{sM}, s{sT0}, 2
            s_lshl_b32 s{sM}, s{sM}, 3
            s_lshr_b32 s{sT2}, s{sT1}, 2
            s_add_u32 s{sM}, s{sM}, s{sT2}
            s_lshl_b32 s{sM}, s{sM}, 1
            s_bfe_u32 s{sT2}, s{sT0}, 0x10001
            s_add_u32 s{sM}, s{sM}, s{sT2}
            s_and_b32 s{sJ}, s{sT0}, 1
            s_lshl_b32 s{sJ}, s{sJ}, 2
            s_and_b32 s{sT2}, s{sT1}, 3
            s_add_u32 s{sJ}, s{sJ}, s{sT2}
            """)
        else:
            a(f"""
            s_lshr_b32 s{sM}, s{sT0}, 1
            s_lshl_b32 s{sM}, s{sM}, 2
            s_and_b32 s{sT2}, s{sT1}, 3
            s_add_u32 s{sM}, s{sM}, s{sT2}
            s_lshl_b32 s{sM}, s{sM}, 1
            s_and_b32 s{sT2}, s{sT0}, 1
            s_add_u32 s{sM}, s{sM}, s{sT2}
            s_lshr_b32 s{sJ}, s{sT1}, 2
            """)
        if cfg.rotA: a(f"s_lshl_b32 s{sRA}, s{sM}, 8\ns_and_b32 s{sRA}, s{sRA}, 512")
        else: a(f"s_mov_b32 s{sRA}, 0")
        a(f"""
        v_lshrrev_b32 v8, 3, v{vLANE}
        v_and_b32 v9, 7, v{vLANE}
        v_lshl_add_u32 v28, v8, 10, s{sRA}
        v_lshl_add_u32 v28, v9, 4, v28
        v_xor_b32 v29, 512, v28
        s_lshl_b32 s{sZB}, s{sJ}, 2
        s_and_b32 s{sZB}, s{sZB}, {4 if cfg.rotX else 0}
        s_xor_b32 s{sZB}, s{sZB}, s{sWv}
        s_lshl_b32 s{sT2}, s{sM}, 16
        s_lshl_b32 s{sT3}, s{sZB}, 13
        s_add_u32 s{sXO}, s{sT2}, s{sT3}
        s_mov_b32 s{SX+2}, {2048*512*2}
        s_mov_b32 s{SX+3}, 0x20000
        """)

    def x_loads(self):
        a = self.a
        for q in range(8):
            a.vmem(f"buffer_load_dwordx4 {vr(FB+4*q,4)}, v{28+(q>>2)}, {srd(SX)}, s{sXO} offen offset:{(q&3)*128}", ("x", q))

    def setup1(self):
        a = self.a
        for b, size in ((SWI, 512*1792*2), (SWQ, 512*1536*2), (SWO, 512*512*2), (SWS, 2048*2048*2), (SBS, 4096),
                        (SWT, 896*512*2), (SOUT, 2048*512*2), (SDBG, 256), (SW, WS_SIZE)):
            a(f"s_mov_b32 s{b+2}, {size}\ns_mov_b32 s{b+3}, 0x20000")
        if cfg.rotA: a(f"s_lshl_b32 s{sPO}, s{sM}, 5\ns_and_b32 s{sPO}, s{sPO}, 128")
        else: a(f"s_mov_b32 s{sPO}, 0")
        if cfg.rotB: a(f"s_and_b32 s{sRB}, s{sJ}, 3")
        else: a(f"s_mov_b32 s{sRB}, 0")
        a(f"""
        s_lshr_b32 s{sRH}, s{sWv}, 2
        s_and_b32 s{sCG}, s{sWv}, 3
        s_lshl_b32 s{sPB}, s{sWv}, 10
        v_lshlrev_b32 v{vL16}, 4, v{vLANE}
        """)

    def setup2(self):
        a = self.a
        a(f"""
        v_lshrrev_b32 v11, 5, v{vLANE}
        v_and_b32 v12, 31, v{vLANE}
        v_lshl_add_u32 v20, v12, 4, s{sRA}
        v_lshl_add_u32 v20, v11, 10, v20
        v_xor_b32 v21, 512, v20
        """)
        a(f"""
        s_and_b32 s{sT2}, s{sWv}, 1
        s_lshl_b32 s{sT3}, s{sT2}, 2
        v_lshrrev_b32 v14, 4, v{vLANE}
        v_lshlrev_b32 v16, 1, v14
        v_xor_b32 v16, s{sT3}, v16
        v_xor_b32 v16, v16, v9
        v_lshlrev_b32 v16, 4, v16
        v_mul_u32_u24 v{vWI}, 3584, v8
        v_add_u32 v{vWI}, v{vWI}, v16
        v_mul_u32_u24 v{vWQ}, 3072, v8
        v_add_u32 v{vWQ}, v{vWQ}, v16
        v_lshl_add_u32 v{vWT}, v8, 10, v16
        v_add_u32 v14, s{sT3}, v14
        v_xor_b32 v14, v14, v9
        v_lshlrev_b32 v14, 4, v14
        v_lshl_add_u32 v{vWS}, v8, 13, v14
        s_mul_i32 s{sWIa}, s{sWv}, {8*3584}
        s_lshl_b32 s{sT3}, s{sJ}, 8
        s_add_u32 s{sWIa}, s{sWIa}, s{sT3}
        s_xor_b32 s{sT1}, s{sRA}, 512
        s_mul_i32 s{sT3}, s{sT1}, {3584//2}
        s_add_u32 s{sWIb}, s{sWIa}, s{sT3}
        s_mul_i32 s{sT3}, s{sRA}, {3584//2}
        s_add_u32 s{sWIa}, s{sWIa}, s{sT3}
        s_mul_i32 s{sQKa}, s{sWv}, {8*3072}
        s_lshl_b32 s{sT3}, s{sJ}, 7
        s_add_u32 s{sQKa}, s{sQKa}, s{sT3}
        s_mul_i32 s{sT0}, s{sRA}, {3072//2}
        s_mul_i32 s{sT1}, s{sT1}, {3072//2}
        s_add_u32 s{sQKb}, s{sQKa}, s{sT1}
        s_add_u32 s{sQKa}, s{sQKa}, s{sT0}
        s_lshl_b32 s{sWT}, s{sWv}, 13
        s_add_u32 s{sWT}, s{sWT}, s{sT3}
        s_lshl_b32 s{sSPO}, s{sM}, 6
        s_lshl_b32 s{sT3}, s{sRH}, 5
        s_add_u32 s{sSPO}, s{sSPO}, s{sT3}
        s_lshl_b32 s{sT3}, s{sT2}, 4
        s_add_u32 s{sSPO}, s{sSPO}, s{sT3}
        s_bfe_u32 s{sT3}, s{sWv}, 0x10001
        s_add_u32 s{sSPO}, s{sSPO}, s{sT3}
        s_lshl_b32 s{sSPO}, s{sSPO}, 12
        s_and_b32 s{sT3}, s{sM}, 1
        s_lshl_b32 s{sT3}, s{sT3}, 11
        s_add_u32 s{sSPO}, s{sSPO}, s{sT3}
        s_xor_b32 s{sSPF}, s{sSPO}, {64*4096}
        s_lshl_b32 s{sMJW}, s{sM}, 3
        s_add_u32 s{sMJW}, s{sMJW}, s{sJ}
        s_lshl_b32 s{sMJW}, s{sMJW}, 3
        s_add_u32 s{sMJW}, s{sMJW}, s{sWv}
        s_mov_b32 s{sGC}, {f32(-2.302208198*0.044715)}
        s_mov_b32 s{sGC+1}, {f32(-2.302208198)}
        s_mov_b32 s{sONE}, 0x3f803f80
        s_mov_b32 s{sMSK}, 0xffff0000
        """)

    def halo_loads(self):
        a = self.a
        a(f"""
        s_lshl_b32 s{sT2}, s{sM}, 6
        s_max_u32 s{sT2}, s{sT2}, 16
        s_sub_u32 s{sT2}, s{sT2}, 16
        s_lshl_b32 s{sT3}, s{sWv}, 1
        s_add_u32 s{sT2}, s{sT2}, s{sT3}
        s_lshl_b32 s{sT2}, s{sT2}, 10
        """)
        for q in range(2):
            a.vmem(f"buffer_load_dwordx4 {vr(TT+4*q,4)}, v{20+q}, {srd(SX)}, s{sT2} offen", "xh")

    def touch_z2(self):
        a = self.a
        nsh = 8 if cfg.mapmode == 2 else 4
        rows = 512 // nsh; rw = rows // 4
        a(f"""
        s_lshr_b32 s{sT1}, s{sM}, 1
        s_and_b32 s{sT1}, s{sT1}, {nsh-1}
        s_lshl_b32 s{sT1}, s{sT1}, 2
        s_add_u32 s{sT1}, s{sT1}, s{sWv}
        s_mul_i32 s{sZC}, s{sT1}, {rw*3584}
        s_lshl_b32 s{sT2}, s{sJ}, 8
        s_add_u32 s{sZC}, s{sZC}, s{sT2}
        v_bfe_u32 v{TT+9}, v{vLANE}, 1, {rw.bit_length()-1}
        v_mul_u32_u24 v{TT+9}, 3584, v{TT+9}
        v_and_b32 v{TT+10}, 1, v{vLANE}
        v_lshl_add_u32 v{TT+9}, v{TT+10}, 7, v{TT+9}
        s_mov_b32 exec_hi, {hex(((1 << (2*rw)) - 1) >> 32)}
        """)
        a.vmem(f"buffer_load_dword v13, v{TT+9}, {srd(SWI)}, s{sZC} offen offset:1792", "touch")
        a("s_mov_b64 exec, -1")

    def touch_w(self):
        a = self.a
        nsh = 8 if cfg.mapmode == 2 else 4
        rw = 512 // nsh // 8; lb = rw.bit_length() - 1
        a(f"""
        v_and_b32 v{TT+10}, {rw-1}, v{vLANE}
        v_mul_u32_u24 v{TT+10}, 3072, v{TT+10}
        v_lshrrev_b32 v{TT+11}, {lb}, v{vLANE}
        v_lshl_add_u32 v{TT+10}, v{TT+11}, 10, v{TT+10}
        s_lshl_b32 s{sT2}, s{sJ}, 7
        s_add_u32 s{sC2}, s{sC2}, s{sT2}
        s_mov_b32 exec_lo, {hex(((1 << (3*rw)) - 1) & 0xffffffff)}
        s_mov_b32 exec_hi, {hex(((1 << (3*rw)) - 1) >> 32)}
        """)
        a.vmem(f"buffer_load_dword v13, v{TT+10}, {srd(SWQ)}, s{sC2} offen", "touch")
        a(f"s_mov_b32 exec_lo, {hex((1 << (2*rw)) - 1)}\ns_mov_b32 exec_hi, 0")
        a.vmem(f"buffer_load_dword v13, v{TT+9}, {srd(SWI)}, s{sZC} offen", "touch")
        a("s_mov_b64 exec, -1")

    def code_prefetch(self):
        a = self.a
        a(f"""
        s_getpc_b64 s[4:5]
        L_pc:
        s_lshr_b32 s{sT2}, s2, 3
        s_lshl_b32 s{sT2}, s{sT2}, 11
        v_lshl_add_u32 v15, v0, 2, s{sT2}
        v_min_u32 v15, L_end-L_pc-4, v15
        """)
        a.vmem("global_load_dword v13, v15, s[4:5]", "pf")

    def nonce_publish(self):
        a = self.a
        sk = a.lab("non")
        a(f"""
        s_or_b32 s{sT2}, s2, s{sWv}
        s_cmp_lg_u32 s{sT2}, 0
        s_cbranch_scc1 {sk}
        s_memrealtime s[6:7]
        s_waitcnt lgkmcnt(0)
        v_mov_b32 v26, s6
        v_mov_b32 v27, 1
        s_mov_b64 exec, 1
        buffer_store_dwordx2 v[26:27], off, {srd(SDBG)}, 0 sc1
        s_mov_b64 exec, -1
        {sk}:
        """)

    def ln_coef(self, s, d, n, dup=True):
        t = f"""v_mul_f32 v{s}, {f32(-1/n)}, v{s}
            v_mul_f32 v{s+1}, {f32(1/n)}, v{s+1}
            v_fma_f32 v{s+1}, -v{s}, v{s}, v{s+1}
            v_max_f32 v{s+1}, 0, v{s+1}
            v_add_f32 v{s+1}, {f32(1e-5)}, v{s+1}
            v_rsq_f32 v{d}, v{s+1}
            v_mul_f32 v{d+2}, v{s}, v{d}
            v_mov_b32 v{d+1}, v{d}
            v_mov_b32 v{d+3}, v{d+2}"""
        return t

    def ln_setup(self):
        a = self.a
        T = ACC; U = XR; MK = ACC + 8
        a(f"""
        s_lshl_b32 s{sT2}, s{sCG}, 2
        v_lshrrev_b32 v14, 4, v{vLANE}
        v_add_u32 v14, s{sT2}, v14
        v_xor_b32 v14, v14, v9
        v_lshlrev_b32 v14, 4, v14
        v_lshl_add_u32 v14, v9, 8, v14
        v_and_b32 v15, 1, v8
        v_lshl_add_u32 v14, v15, 14, v14
        s_lshr_b32 s{sT2}, s{sZB}, 2
        s_lshl_b32 s{sT2}, s{sT2}, 15
        v_add_u32 v16, s{sT2}, v14
        s_lshl_b32 s{sT2}, s{sRH}, 15
        s_lshl_b32 s{sT3}, s{sWv}, 1
        v_add_u32 v{TT+8}, s{sT3}, v11
        v_xor_b32 v{TT+8}, v{TT+8}, v9
        v_lshlrev_b32 v{TT+8}, 4, v{TT+8}
        v_lshl_add_u32 v{TT+8}, v12, 8, v{TT+8}
        v_add_u32 v{TT+8}, {HALO}, v{TT+8}
        v_lshrrev_b32 v8, 4, v{vLANE}
        v_and_b32 v9, 15, v{vLANE}
        v_xor_b32 v14, v9, v8
        v_lshlrev_b32 v14, 4, v14
        v_lshl_add_u32 v14, v8, 8, v14
        v_add_u32 v14, s{sT2}, v14
        s_mul_i32 s{sT2}, s{sRH}, {1024+64}
        v_xor_b32 v14, s{sT2}, v14
        v_xor_b32 v15, {1024+64}, v14
        v_mov_b32 v{MK}, 0xffff0000
        """)
        self.addr_nat(ACC + 12)
        for k in range(4): a(f"v_mov_b32 v{T+k}, 0")

    def layernorm_x(self, extra=0):
        a = self.a
        T = ACC; U = XR; MK = ACC + 8
        self.stamp("x0", True)
        if extra: a(f"s_cmp_eq_u32 s{sRH}, 0")
        for q in range(8):
            if extra:
                if q % 2 == 0:
                    n = len(a.vm) - 1 - a.vm.index(("x", q + 1))
                    sk = a.lab("xw")
                    a(f"s_waitcnt vmcnt({n+extra})\ns_cbranch_scc0 {sk}")
                    a.wait_vm(("x", q + 1))
                    a(f"{sk}:")
            else: a.wait_vm(("x", q))
            for r in range(4):
                x = FB + 4 * q + r
                a(f"v_dot2c_f32_bf16 v{T+2*(r&1)}, s{sONE}, v{x}")
                a(f"v_lshlrev_b32 v{U+8*q+2*r}, 16, v{x}")
                a(f"v_dot2c_f32_bf16 v{T+1+2*(r&1)}, v{x}, v{x}")
                a(f"v_and_b32 v{U+8*q+2*r+1}, v{MK}, v{x}")
            if q >= cfg.ln_d1: self.pump_d(1)
        self.stamp("x1", True)
        a(f"v_pk_add_f32 {vr(T,2)}, {vr(T,2)}, {vr(T+2,2)}")
        for pat in ("quad_perm:[1,0,3,2]", "quad_perm:[2,3,0,1]", "row_half_mirror"):
            for k in (0, 1): a(f"v_add_f32_dpp v{T+k}, v{T+k}, v{T+k} {pat} {DPPM}")
        a(self.ln_coef(T, T + 4, 512))
        for q in range(8):
            for r in range(4): a(f"v_pk_fma_f32 {vr(U+8*q+2*r,2)}, {vr(U+8*q+2*r,2)}, {vr(T+4,2)}, {vr(T+6,2)}")
            for r in range(4): a(f"v_cvt_pk_bf16_f32 v{FB+4*q+r}, v{U+8*q+2*r}, v{U+8*q+2*r+1}")
            a.ds(f"ds_write_b128 v16, {vr(FB+4*q,4)} offset:{q*2048}")
            self.pump_d(1)

    def x_reads(self, kss):
        return [(f"ds_read_b128 {vr(X(p,ks),4)}, v{14+(ks&1)} offset:{p*16384+(ks&~1)*1024}", ks & 3) for ks in kss for p in range(2)]

    def halo_ln(self, T):
        a = self.a
        U = T + 8
        a.wait_vm("xh")
        for r in range(8):
            a(f"v_lshlrev_b32 v{U+2*r}, 16, v{TT+r}"); yield
            a(f"v_and_b32 v{U+2*r+1}, s{sMSK}, v{TT+r}"); yield
        a(f"v_add_f32 v{T}, v{U}, v{U+1}"); yield
        a(f"v_mul_f32 v{T+1}, v{U}, v{U}"); yield
        for r in range(1, 16):
            if r > 1: a(f"v_add_f32 v{T}, v{T}, v{U+r}"); yield
            a(f"v_fmac_f32 v{T+1}, v{U+r}, v{U+r}"); yield
        for pat in ("quad_perm:[1,0,3,2]", "quad_perm:[2,3,0,1]", "row_half_mirror", "row_mirror"):
            for k in (0, 1): a(f"v_add_f32_dpp v{T+k}, v{T+k}, v{T+k} {pat} {DPPM}"); yield
        for k in (0, 1): a(f"v_mov_b32 v{T+2+k}, v{T+k}"); yield
        for k in (0, 1): a(f"v_permlane16_swap_b32 v{T+k}, v{T+2+k}"); yield
        for k in (0, 1): a(f"v_add_f32 v{T+k}, v{T+k}, v{T+2+k}"); yield
        for ins in self.ln_coef(T, T + 4, 512).split("\n")[:7]: a(ins); yield
        for r in range(16): a(f"v_fma_f32 v{U+r}, v{U+r}, v{T+4}, v{T+6}"); yield
        for r in range(8): a(f"v_cvt_pk_bf16_f32 v{TT+r}, v{U+2*r}, v{U+2*r+1}"); yield
        self.halo_done = True

    def halo_write(self):
        assert self.halo_done
        self.a(f"v_and_b32 v14, 0x7fff, v14\nv_add_u32 v14, {HALO}, v14")
        for q in range(2):
            self.a.ds(f"ds_write_b128 v{TT+8}, {vr(TT+4*q,4)} offset:{q*8192}")

    def addr_nat(self, t):
        a = self.a
        a(f"""
        v_lshrrev_b32 v{t}, 4, v{vLANE}
        v_bfe_u32 v{t+1}, v{vLANE}, 2, 2
        v_and_b32 v{t+2}, 3, v{vLANE}
        v_lshl_add_u32 v{t+3}, v{t}, 3, v{t+1}
        v_lshlrev_b32 v{t+3}, 7, v{t+3}
        v_lshl_add_u32 v{t+3}, v{t+2}, 3, v{t+3}
        v_lshrrev_b32 v{t+1}, 1, v{t+1}
        v_and_b32 v{t+2}, 1, v{t}
        v_lshl_add_u32 v{t+1}, v{t+2}, 1, v{t+1}
        v_xor_b32 v{t+1}, s{sCG}, v{t+1}
        v_lshl_add_u32 v8, v{t+1}, 5, v{t+3}
        s_lshl_b32 s{sT2}, s{sRH}, 12
        v_add_u32 v8, s{sT2}, v8
        v_xor_b32 v9, 64, v8
        v_add_u32 v9, 512, v9
        v_xor_b32 v10, 4096, v8
        v_xor_b32 v11, 4096, v9
        """)
        self.win = 0

    def addr_nat4(self, t):
        a = self.a
        a(f"""
        v_lshrrev_b32 v{t}, 4, v{vLANE}
        v_bfe_u32 v{t+1}, v{vLANE}, 2, 2
        v_and_b32 v{t+2}, 3, v{vLANE}
        v_lshl_add_u32 v{t+3}, v{t}, 3, v{t+1}
        v_lshlrev_b32 v{t+3}, 7, v{t+3}
        v_lshl_add_u32 v{t+3}, v{t+2}, 3, v{t+3}
        v_lshrrev_b32 v{t+1}, 1, v{t+1}
        v_and_b32 v{t+2}, 1, v{t}
        v_lshl_add_u32 v{t+1}, v{t+2}, 1, v{t+1}
        s_lshl_b32 s{sT2}, s{sRH}, 1
        s_lshl_b32 s{sT3}, s{sRH}, 12
        v_xor_b32 v{t+1}, s{sT2}, v{t+1}
        v_lshl_add_u32 v8, v{t+1}, 5, v{t+3}
        v_add_u32 v8, s{sT3}, v8
        v_xor_b32 v9, 32, v8
        v_xor_b32 v10, 64, v8
        v_xor_b32 v11, 96, v8
        """)
        self.win = 0

    def addr_perm(self, t):
        a = self.a
        a(f"""
        v_lshrrev_b32 v{t}, 4, v{vLANE}
        v_lshrrev_b32 v{t+3}, 2, v{vLANE}
        v_lshlrev_b32 v{t+3}, 7, v{t+3}
        v_and_b32 v{t+2}, 3, v{vLANE}
        v_lshl_add_u32 v{t+3}, v{t+2}, 3, v{t+3}
        v_bfe_u32 v{t+1}, v{vLANE}, 3, 1
        v_lshrrev_b32 v{t+2}, 1, v{t}
        v_xor_b32 v{t+2}, v{t+2}, v{t}
        v_and_b32 v{t+2}, 1, v{t+2}
        v_lshl_add_u32 v{t+1}, v{t+2}, 1, v{t+1}
        s_lshl_b32 s{sT2}, s{sRH}, 1
        s_lshl_b32 s{sT3}, s{sRH}, 11
        v_xor_b32 v{t+1}, s{sT2}, v{t+1}
        v_lshl_add_u32 v8, v{t+1}, 5, v{t+3}
        v_add_u32 v8, s{sT3}, v8
        v_xor_b32 v9, 32, v8
        v_xor_b32 v10, 64, v8
        v_xor_b32 v11, 96, v8
        """)
        self.win = 0

    def addr_wsp(self):
        a = self.a
        a(f"""
        v_and_b32 v8, 15, v{vLANE}
        v_lshrrev_b32 v9, 4, v{vLANE}
        s_lshl_b32 s{sT2}, s{sRH}, 2
        v_add_u32 v9, s{sT2}, v9
        v_lshrrev_b32 v10, 1, v8
        v_xor_b32 v9, v9, v10
        v_lshlrev_b32 v9, 4, v9
        v_lshl_add_u32 v8, v8, 7, v9
        s_lshl_b32 s{sT2}, s{sRH}, 12
        v_add_u32 v8, s{sT2}, v8
        v_xor_b32 v9, 4096, v8
        """)
        self.win = 0

    def zsteps(self, s0, acc, nv):
        out = []
        for n in range(8):
            s = s0 + n // 2; e = n // 4
            def reads(b, s=s, n=n):
                off = self.window(s, 4)
                return [(f"ds_read_b64_tr_b16 {vr(b+q*4+h*2,2)}, v{8+2*(q&1)+h} offset:{off+((n&1)*4+(q&~1))*4096}", q) for q in range(4) for h in range(2)]
            def mfmas(b, n=n, e=e):
                o = []
                for q in range(4):
                    ks = (n & 3) * 4 + q
                    for p in range(2):
                        c = vr(acc + (p * 2 + e) * 4, 4)
                        o.append((f"{MF} {c}, {vr(b+q*4,4)}, {vr(X(p,ks),4)}, {c if ks else 0}", q))
                return o
            out.append(Step(s, reads, mfmas, nv=nv, nd=2))
        return out

    def qsteps(self, s0, nv):
        out = []
        for ks in range(16):
            s = s0 + ks // 2
            def reads(b, s=s, ks=ks):
                off = self.window(s, 4)
                o = [(f"ds_read_b64_tr_b16 {vr(b+pn*4+h*2,2)}, v{8+2*(ks&1)+h} offset:{off+pn*8192}", pn) for pn in range(3) for h in range(2)]
                if ks % 2 == 0: o.append((f"ds_read_b128 {vr(b+12,4)}, v14 offset:{ks*1024}", 3))
                return o
            def mfmas(b, ks=ks):
                o = []
                for pn in range(3):
                    for p in range(2):
                        w = vr(b + pn * 4, 4); x = vr(X(p, ks), 4); c = vr(ACC + pn * 8 + p * 4, 4)
                        o.append((f"{MF} {c}, {w}, {x}, {c if ks else 0}" if pn < 2 else f"{MF} {c}, {x}, {w}, {c if ks else 0}", pn))
                if ks % 2 == 0:
                    xh = vr(b + 12, 4); c1 = vr(ACC + 24, 4); c2 = vr(ACC + 28, 4)
                    o.append((f"{MF} {c1}, {vr(b+4,4)}, {xh}, {c1 if ks else 0}", 3))
                    o.append((f"{MF} {c2}, {xh}, {vr(b+8,4)}, {c2 if ks else 0}", 3))
                return o
            out.append(Step(s, reads, mfmas, nv=nv, nd=cfg.nd_q[ks & 1]))
        return out

    def bacc(self, which, tf, e):
        k = tf * 2 + e
        if which == 0: return ACC + 4 * k
        return (Z2R + 4 * k) if k < 4 else (TT + 4 * (k - 4))

    def bsteps(self, s0, which, nv, nd):
        out = []
        for n in range(16):
            s = s0 + n // 4
            def reads(b, s=s, n=n):
                off = self.window(s, 2)
                return [(f"ds_read_b128 {vr(b+tf*4,4)}, v{8+(tf>>1)} offset:{off+(n&3)*8192+(tf&1)*2048}", tf >> 1) for tf in range(4)]
            def mfmas(b, n=n):
                o = []
                for tf in range(4):
                    for e in range(2):
                        c = vr(self.bacc(which, tf, e), 4)
                        o.append((f"{MF} {c}, {vr(XR+(n*2+e)*4,4)}, {vr(b+tf*4,4)}, {c if n else 0}", tf >> 1))
                return o
            def pre(n=n):
                self.flush_d(("z", n)); self.a.wait_vm(("z", n))
            out.append(Step(s, reads, mfmas, pre=pre if which == 0 else None, nv=nv, nd=nd, il=1))
        return out

    def csteps(self, s0, cnt, acc, opnd, tagname, nv=0, nd=1):
        out = []
        for n in range(cnt):
            s = s0 + n // 4
            def reads(b, s=s, n=n):
                off = self.window(s, 4)
                if tagname == "o":
                    return [(f"ds_read_b64_tr_b16 {vr(b+cf*4+2*h,2)}, v{8+(cf^(2*h))} offset:{off+(n&3)*8192+h*512}", cf) for cf in range(4) for h in range(2)]
                o = lambda h: ((n >> 1) & 1) * 16384 + (n & 1) * 4096 + h * 8192
                return [(f"ds_read_b64_tr_b16 {vr(b+cf*4+2*h,2)}, v{8+cf} offset:{off+o(h)}", cf) for cf in range(4) for h in range(2)]
            def mfmas(b, n=n):
                return [(f"{MF} {vr(acc+4*cf,4)}, {vr(b+cf*4,4)}, {vr(opnd+4*n,4)}, {vr(acc+4*cf,4) if n else 0}", cf) for cf in range(4)]
            def pre(n=n):
                self.flush_d((tagname, n)); self.a.wait_vm((tagname, n))
            out.append(Step(s, reads, mfmas, pre=pre, nv=nv, nd=nd, il=2))
        return out

    def gelu(self, regs, T):
        a = self.a
        P = [(R, T + k) for k, R in enumerate(regs)]
        for R, t in P: a(f"v_mul_f32 v{t}, v{R}, v{R}"); yield
        for R, t in P: a(f"v_fmamk_f32 v{t}, v{t}, {f32(-2.302208198*0.044715)}, v15"); yield
        for R, t in P: a(f"v_mul_f32 v{t}, v{t}, v{R}"); yield
        for R, t in P: a(f"v_exp_f32 v{t}, v{t}"); yield; yield
        for R, t in P: a(f"v_add_f32 v{t}, 1.0, v{t}"); yield
        for R, t in P: a(f"v_rcp_f32 v{t}, v{t}"); yield; yield
        for R, t in P: a(f"v_mul_f32 v{R}, v{R}, v{t}"); yield

    def z2_part(self, e):
        a = self.a
        if e == 0: a(f"v_mov_b32 v15, {f32(-2.302208198)}")
        yield from self.gelu([Z2R + (p * 2 + e) * 4 + r for p in range(2) for r in range(4)], Z1R + 8)
        for r in range(4):
            for p in range(2):
                V = Z2R + (p * 2 + e) * 4 + r; S = Z1R + 2 * p; Q = S + 1
                if e == 0 and r == 0:
                    a(f"v_mul_f32 v{Q}, v{V}, v{V}"); yield
                else:
                    a(f"v_add_f32 v{S}, v{V-1 if (e == 0 and r == 1) else S}, v{V}"); yield
                    a(f"v_fmac_f32 v{Q}, v{V}, v{V}"); yield

    def z2_addr(self):
        a = self.a
        t = TT + 12
        for ins in f"""v_and_b32 v{t}, 15, v{vLANE}
        v_lshrrev_b32 v{t+1}, 4, v{vLANE}
        s_lshl_b32 s{sT2}, s{sCG}, 2\0v_add3_u32 v{t+2}, v{t}, v{t+1}, s{sT2}
        v_and_b32 v{t+2}, 15, v{t+2}
        v_lshl_add_u32 v{t+3}, v{t+1}, 4, v{t+2}
        s_add_u32 s{sT2}, s{sPB}, {KVX}\0v_lshl_add_u32 v{TT+9}, v{t+3}, 4, s{sT2}
        v_lshl_add_u32 v{t+3}, v{t}, 4, v{t+2}
        s_lshl_b32 s{sT2}, s{sRH}, 12\0s_add_u32 s{sT2}, s{sT2}, {KVX}\0v_lshl_add_u32 v{TT+10}, v{t+3}, 4, s{sT2}
        v_lshl_add_u32 v{t+3}, v{t}, 4, v{t+1}
        v_lshlrev_b32 v{TT+11}, 4, v{t+3}""".split("\n"):
            a(ins.replace("\0", "\n")); yield

    def z2_publish(self):
        a = self.a
        W = Z1R; GQ = Z1R + 12
        a.ds(f"ds_write_b128 v{TT+9}, {vr(W,4)}")
        self.get_nonce()
        a(f"s_lshr_b32 s{sZC}, s{sMJW}, 2\ns_lshl_b32 s{sZC}, s{sZC}, 9\ns_lshl_b32 s{sT2}, s{sCG}, 6\ns_add_u32 s{sZC}, s{sZC}, s{sT2}\ns_add_u32 s{sZC}, s{sZC}, {WS_STATS}\nv_mov_b32 v{GQ+1}, v0\nv_mov_b32 v{GQ+3}, v0")
        if cfg.pubbar:
            self.barrier()
        else:
            yield "B"
        a.ds(f"ds_read_b128 {vr(W,4)}, v{TT+10}", "pub")
        for _ in range(cfg.pubgap): yield
        a.wait_lg("pub")
        for sh in (8, 4, 2, 1):
            for k in range(4): a(f"v_add_f32_dpp v{W+k}, v{W+k}, v{W+k} row_ror:{sh} {DPPM}"); yield
        a(f"""
        s_mov_b32 vcc_lo, 0xaaaaaaaa
        s_mov_b32 vcc_hi, 0xaaaaaaaa
        v_cndmask_b32 v{GQ}, v{W}, v{W+2}, vcc
        v_cndmask_b32 v{GQ+2}, v{W+1}, v{W+3}, vcc
        s_mov_b32 exec_lo, 0x00030003
        s_mov_b32 exec_hi, 0x00030003
        """)
        a.vmem(f"buffer_store_dwordx4 {vr(GQ,4)}, v{TT+11}, {srd(SW)}, s{sZC} offen sc1", "gst")
        a("s_mov_b64 exec, -1")
        self.stamp("z2a")
        yield

    def z2_finish(self, g_issue, g_check):
        a = self.a
        G = TT; t = Z1R
        for ins in f"""v_and_b32 v{t+9}, 0x1f0, v{vL16}
        v_lshrrev_b32 v{t+1}, 5, v{vLANE}
        v_lshl_add_u32 v{t+8}, v{t+1}, 10, v{t+9}
        s_add_u32 s{sT2}, s{sPB}, {KVX}\0v_lshl_add_u32 v{t+10}, v{vLANE}, 3, s{sT2}
        v_and_b32 v{t}, 7, v{vLANE}
        v_lshrrev_b32 v{t+1}, 4, v{vLANE}
        v_lshlrev_b32 v{t+1}, 2, v{t+1}
        v_lshl_add_u32 v{t}, v{t}, 4, v{t+1}
        v_bfe_u32 v{t+1}, v{vLANE}, 3, 1
        v_add_u32 v{t}, v{t}, v{t+1}
        s_add_u32 s{sT2}, s{sPB}, {KVX}\0v_lshl_add_u32 v{t+11}, v{t}, 3, s{sT2}""".split("\n"):
            a(ins.replace("\0", "\n")); yield
        yield g_issue
        a(f"""
        s_lshl_b32 s{sC2}, s{sM}, 13
        s_lshl_b32 s{sT3}, s{sRH}, 9
        s_add_u32 s{sC2}, s{sC2}, s{sT3}
        s_add_u32 s{sC2}, s{sC2}, {WS_STATS}
        s_add_u32 s{sZC}, s{sC2}, 4096
        """)
        lds = [f"buffer_load_dwordx4 {vr(G+4*k,4)}, v{t+8+(k==3)}, {srd(SW)}, s{sZC if k >= 2 else sC2} offen offset:{(k&1)*2048} sc1" for k in range(4)]
        for l in lds: a.vmem(l, "gran")
        yield g_check
        cond = "\n".join(f"v_bitop3_b32 v{t+k}, v{G+4*k+1}, v{G+4*k+3}, v0 bitop3:0x7e" for k in range(4))
        cond += f"\nv_or3_b32 v{t}, v{t}, v{t+1}, v{t+2}\nv_or_b32 v{t}, v{t}, v{t+3}\nv_cmp_ne_u32 vcc, 0, v{t}"
        self.spin("\n".join(lds), cond, "gran")
        self.stamp("stats")
        yield
        a(f"s_mov_b32 exec_lo, 0\nv_mov_b32 v{G+12}, 0\nv_mov_b32 v{G+14}, 0\ns_mov_b32 exec_lo, -1"); yield
        for k, d in ((0, 0), (2, 1)):
            a(f"v_add_f32 v{G+k}, v{G+k}, v{G+4+k}"); yield
            a(f"v_add_f32 v{G+8+k}, v{G+8+k}, v{G+12+k}"); yield
            a(f"v_add_f32 v{t+d}, v{G+k}, v{G+8+k}"); yield
        for k in (0, 1): a(f"v_mov_b32 v{t+2+k}, v{t+k}"); yield
        for k in (0, 1): a(f"v_permlane32_swap_b32 v{t+k}, v{t+2+k}"); yield
        for k in (0, 1): a(f"v_add_f32 v{t+k}, v{t+k}, v{t+2+k}"); yield
        for ins in self.ln_coef(t, t + 4, 896).split("\n"): a(ins); yield
        for k in (4, 6): a(f"v_permlane16_swap_b32 v{t+k}, v{t+k+1}"); yield
        a(f"""
        s_lshl_b32 s{sZC}, s{sJ}, 19
        s_lshl_b32 s{sT3}, s{sM}, 14
        s_add_u32 s{sZC}, s{sZC}, s{sT3}
        s_lshl_b32 s{sT3}, s{sWv}, 11
        s_add_u32 s{sZC}, s{sZC}, s{sT3}
        s_lshl_b32 s{sT3}, s{sPO}, 3
        s_add_u32 s{sZC}, s{sZC}, s{sT3}
        s_xor_b32 s{sC2}, s{sZC}, 1024
        """)
        for e in range(2):
            for p in range(2):
                V = Z2R + (p * 2 + e) * 4
                for r in range(4): a(f"v_fma_f32 v{V+r}, v{V+r}, v{t+4+p}, v{t+6+p}"); yield
                for h in range(2): a(f"v_cvt_pk_bf16_f32 v{V+h}, v{V+2*h}, v{V+2*h+1}"); yield
                a.ds(f"ds_write_b64 v{t+10}, {vr(V,2)} offset:{p*512}")
            for h in range(2): a.ds(f"ds_read_b64_tr_b16 {vr(G+4*e+2*h,2)}, v{t+11} offset:{h*16}", ("tp", e))
        for e in range(2):
            if e:
                for _ in range(4): yield
            a.wait_lg(("tp", e))
            a.vmem(f"buffer_store_dwordx4 {vr(G+4*e,4)}, v{vL16}, {srd(SW)}, s{sC2 if e else sZC} offen sc1", "z2n"); yield
        assert self.cur_stage < 12, "transposition scratch would race with the K/V exchange"
        self.stamp("z2n")

    def flag2(self):
        self.flag_store("z2n", f"s_lshl_b32 s{sT1}, s{sJ}, 3\ns_add_u32 s{sT1}, s{sT1}, s{sWv}\ns_lshl_b32 s{sT1}, s{sT1}, 5\n"
                        f"s_add_u32 s{sT1}, s{sT1}, s{sM}\ns_lshl_b32 s{sT1}, s{sT1}, 2\ns_add_u32 s{sT1}, s{sT1}, {WS_F2}")

    def attn(self, R, t):
        a = self.a
        Qb, Kb, VV = R, R + 4, R + 8
        KP = t + 8; AD = t + 12
        a("s_nop 7")
        for p in range(2):
            for h in range(2):
                a(f"v_cvt_pk_bf16_f32 v{Kb+2*p+h}, v{ACC+8+4*p+2*h}, v{ACC+8+4*p+2*h+1}"); yield
                a(f"v_cvt_pk_bf16_f32 v{VV+4*p+2+h}, v{ACC+16+4*p+2*h}, v{ACC+16+4*p+2*h+1}"); yield
                a(f"v_cvt_pk_bf16_f32 v{Qb+2*p+h}, v{ACC+4*p+2*h}, v{ACC+4*p+2*h+1}"); yield
        a(f"s_lshl_b32 s{sT2}, s{sWv}, 11\ns_add_u32 s{sT2}, s{sT2}, {KVX}\nv_add_u32 v{AD}, s{sT2}, v{vL16}")
        NEG = t + 13; ZV = t + 14; BO = ACC + 16
        def lit(f):
            m = sum(1 << l for l in range(64) if f(l & 15, l >> 4))
            return f"s_mov_b32 vcc_lo, 0x{m & 0xffffffff:x}\ns_mov_b32 vcc_hi, 0x{m >> 32:x}"
        a(f"v_mov_b32 v{NEG}, {f32(-1e30)}\ns_or_b32 s{sT2}, s{sM}, s{sRH}\ns_cmp_eq_u32 s{sT2}, 0\ns_cselect_b32 s{sT2}, {f32(-1e30)}, 0\nv_mov_b32 v{ZV}, s{sT2}")
        yield
        sk = a.lab("ap"); sk2 = a.lab("ap")
        a(f"s_cmp_lg_u32 s{sRH}, 0\ns_cbranch_scc1 {sk}")
        a(f"ds_write_b128 v{AD}, {vr(Kb,4)}")
        a(f"ds_write_b64 v{AD}, {vr(VV+2,2)} offset:1024")
        a(f"ds_write_b64 v{AD}, {vr(VV+6,2)} offset:1032")
        a(f"s_branch {sk2}\n{sk}:")
        a(f"ds_write_b128 v{AD}, {vr(ACC+24,4)}")
        a(f"ds_write_b128 v{AD}, {vr(ACC+28,4)} offset:1024")
        a(f"{sk2}:")
        a(f"v_xor_b32 v{AD}, 0x2000, v{AD}")
        yield
        for r in range(4):
            a(lit(lambda i, g: 4 * g + r >= i + 9))
            a(f"v_cndmask_b32 v{ACC+r}, v{NEG}, v{ZV}, vcc\nv_cndmask_b32 v{ACC+8+r}, v{NEG}, v{ZV}, vcc"); yield; yield
        for rr in range(2):
            sk = a.lab("am")
            a(f"s_cmp_lg_u32 s{sRH}, 0\ns_cbranch_scc1 {sk}")
            for r in (2 * rr, 2 * rr + 1):
                for p in range(2):
                    a(lit(lambda i, g: ((2 * i + p + 16 - 4 * g - r) & ~14) == 0))
                    a(f"v_cndmask_b32 v{ACC+8*p+r}, v{NEG}, v{ZV}, vcc")
            a(f"{sk}:"); yield; yield
        for r in range(4):
            a(lit(lambda i, g: not (0 <= i - 4 * g - r <= 7)))
            a(f"v_cndmask_b32 v{BO+r}, 0, v{NEG}, vcc"); yield
        for p in range(2):
            S = ACC + 8 * p
            a(f"v_mfma_f32_16x16x16_bf16 {vr(S+4,4)}, {vr(Kb+2*p,2)}, {vr(Qb+2*p,2)}, {vr(BO,4)}"); yield
        yield "B"
        a.ds(f"ds_read_b128 {vr(KP,4)}, v{AD}", "kv")
        a.ds(f"ds_read_b128 {vr(t+4,4)}, v{AD} offset:1024", "kv")
        for _ in range(6): yield
        a.wait_lg("kv")
        sk = a.lab("ar"); sk2 = a.lab("ar")
        a(f"s_cmp_eq_u32 s{sRH}, 0\ns_cbranch_scc1 {sk}")
        for k in range(4): a(f"v_mov_b32 v{VV+4*(k>>1)+(k&1)}, v{t+4+k}")
        a(f"s_branch {sk2}\n{sk}:")
        for k in range(4):
            a(f"v_add_f32 v{ACC+24+k}, v{ACC+24+k}, v{KP+k}\nv_add_f32 v{ACC+28+k}, v{ACC+28+k}, v{t+4+k}")
        for h in range(2):
            for p in range(2):
                a(f"v_cvt_pk_bf16_f32 v{KP+2*p+h}, v{ACC+24+2*h}, v{ACC+24+2*h+1}")
                a(f"v_cvt_pk_bf16_f32 v{VV+4*p+h}, v{ACC+28+2*h}, v{ACC+28+2*h+1}")
        a(f"{sk2}:\ns_nop 1")
        yield
        for p in range(2):
            S = ACC + 8 * p
            a(f"v_mfma_f32_16x16x16_bf16 {vr(S,4)}, {vr(KP+2*p,2)}, {vr(Qb+2*p,2)}, {vr(S,4)}"); yield
        for _ in range(4): yield
        CS = 0.25 * 1.4426950408889634
        M = t
        def xred(op):
            for sw in ("v_permlane16_swap_b32", "v_permlane32_swap_b32"):
                for p in range(2): a(f"v_mov_b32 v{M+2*p+1}, v{M+2*p}"); yield
                for p in range(2): a(f"{sw} v{M+2*p}, v{M+2*p+1}"); yield
                for p in range(2): a(f"{op} v{M+2*p}, v{M+2*p}, v{M+2*p+1}"); yield

        for p in range(2):
            S = ACC + 8 * p; m = M + 2 * p
            a(f"v_max3_f32 v{m+1}, v{S+4}, v{S+5}, v{S+6}"); yield
            a(f"v_max3_f32 v{m}, v{S}, v{S+1}, v{S+2}"); yield
            a(f"v_max3_f32 v{m}, v{m}, v{S+3}, v{S+7}"); yield
            a(f"v_max_f32 v{m}, v{m}, v{m+1}"); yield
        yield from xred("v_max_f32")
        for p in range(2): a(f"v_mul_f32 v{M+2*p}, {f32(-CS)}, v{M+2*p}"); yield
        for p in range(2):
            for k in range(8):
                S = ACC + 8 * p + k
                a(f"v_fmamk_f32 v{S}, v{S}, {f32(CS)}, v{M+2*p}"); yield
        for k in range(16): a(f"v_exp_f32 v{ACC+k}, v{ACC+k}"); yield; yield
        PP = ACC + 16; O = ACC + 24
        for p in range(2):
            S = ACC + 8 * p
            for k in range(4): a(f"v_cvt_pk_bf16_f32 v{PP+4*p+k}, v{S+2*k}, v{S+2*k+1}"); yield
        for p in range(2):
            a(f"{MF} {vr(O+4*p,4)}, {vr(VV+4*p,4)}, {vr(PP+4*p,4)}, 0"); yield
        for p in range(2):
            S = ACC + 8 * p; m = M + 2 * p
            for k in range(4): a(f"v_add_f32 v{S+k}, v{S+k}, v{S+4+k}"); yield
            a(f"v_add_f32 v{S}, v{S}, v{S+1}"); yield
            a(f"v_add_f32 v{S+2}, v{S+2}, v{S+3}"); yield
            a(f"v_add_f32 v{m}, v{S}, v{S+2}"); yield
        yield from xred("v_add_f32")
        for p in range(2): a(f"v_rcp_f32 v{M+2*p}, v{M+2*p}"); yield
        for p in range(2):
            for r in range(4):
                a(f"v_mul_f32 v{O+4*p+r}, v{O+4*p+r}, v{M+2*p}"); yield
        for p in range(2):
            for h in range(2):
                a(f"v_cvt_pk_bf16_f32 v{R+2*p+h}, v{O+4*p+2*h}, v{O+4*p+2*h+1}"); yield
        for ins in f"""v_and_b32 v{t}, 0xf0, v{vL16}
        v_lshrrev_b32 v{t+1}, 5, v{vLANE}
        v_lshl_add_u32 v{t}, v{t+1}, 8, v{t}
        v_bfe_u32 v{t+1}, v{vLANE}, 4, 1
        v_lshl_add_u32 v{t}, v{t+1}, 14, v{t}
        v_permlane16_swap_b32 v{R}, v{R+2}
        v_permlane16_swap_b32 v{R+1}, v{R+3}""".split("\n"): a(ins); yield
        a(f"""
        s_lshl_b32 s{sT2}, s{sM}, 1
        s_add_u32 s{sT2}, s{sT2}, s{sRH}
        s_lshl_b32 s{sT2}, s{sT2}, 4
        s_add_u32 s{sT2}, s{sT2}, s{sJ}
        s_lshl_b32 s{sT2}, s{sT2}, 2
        s_add_u32 s{sT2}, s{sT2}, s{sCG}
        s_lshl_b32 s{sT2}, s{sT2}, 9
        s_add_u32 s{sT2}, s{sT2}, {WS_O}
        """)
        a.vmem(f"buffer_store_dwordx4 {vr(R,4)}, v{t}, {srd(SW)}, s{sT2} offen sc1", "o")
        yield
        self.stamp("attn")

    def q_zloads(self):
        for n in range(16):
            def f(n=n):
                a = self.a
                if n % 4 == 0: a(f"s_add_u32 s{sZC}, s{sRB}, {n//4}\ns_and_b32 s{sZC}, s{sZC}, 3\ns_lshl_b32 s{sZC}, s{sZC}, 16\ns_add_u32 s{sZC}, s{sZC}, s{sZB}")
                a(f"s_add_u32 s{sT0}, s{sZC}, {(n%4)*16384}")
                for e in range(2):
                    a.vmem(f"buffer_load_dwordx4 {vr(XR+(n*2+e)*4,4)}, v{vL16}, {srd(SW)}, s{sT0} offen offset:{e*1024} sc1", ("z", n))
            self.dq.append((("z", n), f))

    def part_send(self):
        a = self.a
        a(f"""
        s_lshl_b32 s{sT2}, s{sWv}, 12
        s_add_u32 s{sT2}, s{sT2}, {AUX}
        v_add_u32 v10, s{sT2}, v{vL16}
        v_xor_b32 v11, 0x4000, v10
        s_nop 4
        """)
        for k in range(4): a.ds(f"ds_write_b128 v10, {vr(ACC+16+4*k,4)} offset:{k*1024}"); yield
        yield self.b2[1]
        self.barrier()
        for k in range(4): a.ds(f"ds_read_b128 {vr(ACC+16+4*k,4)}, v11 offset:{k*1024}", "red"); yield
        a(f"s_xor_b32 s{sZC}, s{sMJW}, 64\ns_lshl_b32 s{sZC}, s{sZC}, 11\ns_add_u32 s{sZC}, s{sZC}, {WS_P}")
        for _ in range(4): yield
        a.wait_lg("red")
        for p in range(2):
            for r in range(8): a(f"v_add_f32 v{ACC+8*p+r}, v{ACC+8*p+r}, v{ACC+16+8*p+r}"); yield
            for r in range(4): a(f"v_cvt_pk_bf16_f32 v{ACC+8*p+r}, v{ACC+8*p+2*r}, v{ACC+8*p+2*r+1}"); yield
            a.vmem(f"buffer_store_dwordx4 {vr(ACC+8*p,4)}, v{vL16}, {srd(SW)}, s{sZC} offen offset:{p*1024} sc1", "part"); yield
        self.pollm_issue(WS_F3); yield
        yield self.b2[cfg.g5]
        self.flag_mjw(WS_F5, "part", xor=64); yield
        self.poll_check()
        assert self.b2.index(self.cur_step) >= 5
        self.o_loads(); yield
        self.final_x_loads(); yield
        yield self.b2[cfg.g7]
        self.poll_issue(f"s_lshl_b32 s{sC2}, s{sMJW}, 2\ns_add_u32 s{sC2}, s{sC2}, {WS_F5}", f"v_mov_b32 v{vP+1}, 0"); yield
        yield self.b2[cfg.g8]
        self.poll_check()
        a(f"s_lshl_b32 s{sZC}, s{sMJW}, 11\ns_add_u32 s{sZC}, s{sZC}, {WS_P}")
        for k in range(2):
            a.vmem(f"buffer_load_dwordx4 {vr(ACC+8+4*k,4)}, v{vL16}, {srd(SW)}, s{sZC} offen offset:{k*1024} sc1", "pin")
        self.stamp("pin")
        yield

    def o_loads(self):
        a = self.a
        a(f"""
        s_lshl_b32 s{sT2}, s{sM}, 2
        s_add_u32 s{sT2}, s{sT2}, s{sCG}
        s_lshl_b32 s{sT2}, s{sT2}, 4
        s_add_u32 s{sT2}, s{sT2}, s{sRH}
        s_lshl_b32 s{sT2}, s{sT2}, 10
        s_add_u32 s{sT2}, s{sT2}, {WS_O}
        """)
        for n in range(8):
            if n % 2 == 0 and n: a(f"s_add_u32 s{sT2}, s{sT2}, 4096")
            a.vmem(f"buffer_load_dwordx4 {vr(XR+4*n,4)}, v{vL16}, {srd(SW)}, s{sT2} offen offset:{(n%2)*2048} sc1", ("o", n))

    XO = XR + 32
    def final_x_loads(self):
        a = self.a
        XO = self.XO
        a(f"""
        v_lshrrev_b32 v{XO}, 3, v{vLANE}
        v_and_b32 v{XO+1}, 0x70, v{vL16}
        v_lshl_add_u32 v{XO}, v{XO}, 11, v{XO+1}
        s_lshr_b32 s{sXO}, s{sSPO}, 12
        s_lshl_b32 s{sXO}, s{sXO}, 10
        s_lshl_b32 s{sT2}, s{sJ}, 7
        s_add_u32 s{sXO}, s{sXO}, s{sT2}
        """)
        a.vmem(f"buffer_load_dwordx4 {vr(XO+2,4)}, v{XO}, {srd(SX)}, s{sXO} offen", "xf")

    def e_b(self):
        a = self.a
        for k in range(4): a.ds(f"ds_write_b128 v10, {vr(TT+4*k,4)} offset:{k*1024}")
        a(f"""
        v_lshlrev_b32 v{ACC}, 16, v{vBIAS}
        v_and_b32 v{ACC+1}, s{sMSK}, v{vBIAS}
        s_lshl_b32 s{sT2}, s{sM}, 2
        s_lshl_b32 s{sT3}, s{sRH}, 1
        s_add_u32 s{sT2}, s{sT2}, s{sT3}
        s_mul_i32 s{sT2}, s{sT2}, 28
        s_lshl_b32 s{sT3}, s{sJ}, 2
        s_add_u32 s{sT2}, s{sT2}, s{sT3}
        s_add_u32 s{sT2}, s{sT2}, s{sCG}
        s_lshl_b32 s{sT2}, s{sT2}, 10
        s_add_u32 s{sT2}, s{sT2}, {WS_H}
        s_add_u32 s{sT3}, s{sT2}, {28*1024}
        """)
        for k in range(16): a(f"v_add_f32 v{Z2R+k}, v{Z2R+k}, v{ACC+k//8}")
        a.wait_vm("pin")
        for k in range(8):
            a(f"v_lshlrev_b32 v{ACC+16+2*k}, 16, v{ACC+8+k}\nv_and_b32 v{ACC+17+2*k}, s{sMSK}, v{ACC+8+k}")
        for k in range(16): a(f"v_add_f32 v{Z2R+k}, v{Z2R+k}, v{ACC+16+k}")
        self.boundary(24); self.cur_stage = 24
        for k in range(4): a.ds(f"ds_read_b128 {vr(TT+4*k,4)}, v11 offset:{k*1024}", ("rd", k))
        for k in range(16):
            a.wait_lg(("rd", k // 4))
            a(f"v_add_f32 v{Z2R+k}, v{Z2R+k}, v{TT+k}")
        for k in range(16): a(f"v_mul_f32 v{Z2R+k}, v{Z2R+k}, v{Z1R+k}")
        for p in range(2):
            for k in range(4): a(f"v_cvt_pk_bf16_f32 v{TT+4*p+k}, v{Z2R+8*p+2*k}, v{Z2R+8*p+2*k+1}")
            a.vmem(f"buffer_store_dwordx4 {vr(TT+4*p,4)}, v{vL16}, {srd(SW)}, s{sT2+p} offen sc1", "h")

    def tail(self, s_wo, is_z):
        a = self.a
        AS = ACC; AO = ACC + 16; XO = self.XO; HR = XR + 40
        ss = self.csteps(s_wo, 8, AS, XR, "o", nd=2)
        ss[0].setup = lambda: self.addr_nat4(Z1R)
        if is_z: ss[cfg.f4step].post = lambda: self.flag_mjw(WS_F4, "h")
        self.run_steps(ss)
        self.stamp("sgemm")
        s0 = s_wo + 2
        cs = self.csteps(s0, 14, AO, HR, "h")
        BUF = [16, 32, 48, 64, 80, XR, XR + 16, XR + 96, XR + 112]
        NB = len(BUF)
        self.flush_d()
        self.addr_perm(Z1R)
        a(f"""
        v_and_b32 v16, 15, v{vLANE}
        v_lshrrev_b32 v17, 4, v{vLANE}
        v_and_b32 v18, 7, v{vLANE}
        v_xor_b32 v17, v17, v18
        s_lshl_b32 s{sT2}, s{sRH}, 3
        v_xor_b32 v17, s{sT2}, v17
        v_lshlrev_b32 v17, 4, v17
        v_lshl_add_u32 v14, v16, 8, v17
        s_lshl_b32 s{sT2}, s{sWv}, 12
        s_add_u32 s{sT2}, s{sT2}, {AUX}
        v_add_u32 v14, s{sT2}, v14
        v_xor_b32 v3, 64, v14
        v_xor_b32 v4, 128, v14
        v_xor_b32 v5, 192, v14
        v_lshrrev_b32 v16, 3, v{vLANE}
        v_lshlrev_b32 v18, 1, v18
        v_xor_b32 v18, v18, v16
        v_lshlrev_b32 v18, 4, v18
        v_lshl_add_u32 v15, v16, 8, v18
        s_lshl_b32 s{sT2}, s{sWv}, 11
        s_add_u32 s{sT2}, s{sT2}, {AUX}
        v_add_u32 v15, s{sT2}, v15
        v_xor_b32 v7, 16, v15
        s_lshl_b32 s{sZB}, s{sM}, 2
        s_add_u32 s{sZB}, s{sZB}, s{sCG}
        s_mul_i32 s{sZB}, s{sZB}, 28
        s_add_u32 s{sZB}, s{sZB}, s{sRH}
        s_lshl_b32 s{sZB}, s{sZB}, 10
        s_add_u32 s{sZB}, s{sZB}, {WS_H}
        """)
        WA = (14, 3, 4, 5)
        for k in range(4): a.ds(f"ds_write_b128 v{WA[k]}, {vr(AS+4*k,4)}")
        a.wait_vm(("st", s0 + 2))
        self.barrier()
        self.queue_stage(s0 + 3); self.flush_d()
        self.pollm_issue(WS_F4, 56)
        for k in range(4): a.ds(f"ds_read_b128 {vr(AS+4*k,4)}, v{(15,7)[k&1]} offset:{(k>>1)*16384}", "r2")
        for n in range(NB):
            for r, f in cs[n].reads(BUF[n]): a.ds(r, ("f", n, f))
        a.wait_lg("r2")
        for k in range(8): a(f"v_add_f32 v{AS+k}, v{AS+k}, v{AS+8+k}")
        XX = AS + 8
        a.wait_vm("xf")
        for k in range(4):
            a(f"v_lshlrev_b32 v{XX+2*k}, 16, v{XO+2+k}\nv_and_b32 v{XX+2*k+1}, s{sMSK}, v{XO+2+k}")
        a.wait_vm(("st", s0 + 3))
        self.barrier()
        self.poll_check()
        self.stamp("c_poll")
        for n in range(14):
            if n % 2 == 0: a(f"s_add_u32 s{sT0}, s{sZB}, {n*2048}")
            a.vmem(f"buffer_load_dwordx4 {vr(HR+4*n,4)}, v{vL16}, {srd(SW)}, s{sT0} offen offset:{(n%2)*2048} sc1", ("h", n))
        R = deque()
        for n in range(14):
            a.wait_vm(("h", n))
            for m, f in cs[n].mfmas(BUF[n % NB]):
                a.wait_lg(("f", n, f))
                a(m)
                for _ in range(2):
                    if R:
                        r, tag = R.popleft(); a.ds(r, tag)
            assert not R
            if n + NB < 14: R.extend((r, ("f", n + NB, f)) for r, f in cs[n + NB].reads(BUF[n]))
        for k in range(4): a.ds(f"ds_write_b128 v{WA[k]}, {vr(AO+4*k,4)}")
        T = FB
        self.barrier()
        for k in (0, 2, 1, 3): a.ds(f"ds_read_b128 {vr(AO+4*k,4)}, v{(15,7)[k&1]} offset:{(k>>1)*16384}", ("r1", k & 1))
        for k in range(8):
            a.wait_lg(("r1", k // 4))
            a(f"v_add_f32 v{AO+k}, v{AO+k}, v{AO+8+k}")
        for k in range(8): a(f"v_mul_f32 v{T+k}, {f32(-1.4426950408889634)}, v{AO+k}")
        for k in range(8): a(f"v_exp_f32 v{T+k}, v{T+k}\nv_mul_f32 v{AS+k}, v{AS+k}, v{AO+k}")
        for k in range(8): a(f"v_add_f32 v{T+k}, 1.0, v{T+k}")
        for k in range(8): a(f"v_rcp_f32 v{T+k}, v{T+k}")
        for k in range(8): a(f"v_fmac_f32 v{XX+k}, v{T+k}, v{AS+k}")
        for k in range(4): a(f"v_cvt_pk_bf16_f32 v{AO+k}, v{XX+2*k}, v{XX+2*k+1}")
        a.vmem(f"buffer_store_dwordx4 {vr(AO,4)}, v{XO}, {srd(SOUT)}, s{sXO} offen", "out")
        if cfg.ts:
            a.wait_vm_all()
            self.nts = NTS - 1
            a.wait_lg_all()
            for p in (self.pend, self.prev):
                if p is not None and self.record: a(f"s_mov_b32 s{p[0]}, s{p[1]}")
            self.stamp("end")
            a(f"s_memtime s[74:75]\ns_waitcnt lgkmcnt(0)\ns_sub_u32 s100, s74, s100")
            a(f"s_lshl_b32 s{sT2}, s2, 3\ns_add_u32 s{sT2}, s{sT2}, s{sWv}\ns_lshl_b32 s{sT2}, s{sT2}, 7\ns_add_u32 s{sT2}, s{sT2}, {WS_TS}")
            for k in range(18): a(f"v_mov_b32 v{FB+k}, s{sTS+k}")
            a("s_mov_b64 exec, 1")
            for k in range(5): a(f"buffer_store_dwordx4 {vr(FB+4*k,4)}, off, {srd(SW)}, s{sT2} offset:{16*k}")
        a("s_endpgm")

    def prog_z(self):
        a = self.a
        self.stages = [("z2", i) for i in range(4)] + [("qkv", i) for i in range(8)] + [("z1", i) for i in range(4)] + \
                      [("wspF", i) for i in range(4)] + [("wspO", i) for i in range(4)] + [("wo", i) for i in range(2)] + [("wout", i) for i in range(4)]
        n = len(self.stages)
        self.slots = [2 * SLOT, 3 * SLOT, AUX] + [(2, 0, 1, 3)[(s - 3) % 4] * SLOT for s in range(3, n)]
        self.unlock = {1: (3,), 2: (4, 5, 6)}
        for s in range(7, n): self.unlock[s - 3] = (s,)
        self.cur_stage = -1
        self.layernorm_x()
        self.stamp("x2", True)
        sk = a.lab("o")
        a(f"s_cmp_lg_u32 s{sRH}, 0\ns_cbranch_scc1 {sk}")
        self.queue_stage(0, 1); self.queue_stage(1, 1); self.flush_d()
        a(f"{sk}:")
        self.halo_loads()
        a(f"""
        v_and_b32 v18, 15, v{vLANE}
        v_lshlrev_b32 v18, 2, v18
        s_lshl_b32 s{sT2}, s{sM}, 7
        s_lshl_b32 s{sT3}, s{sRH}, 6
        s_add_u32 s{sT2}, s{sT2}, s{sT3}
        """)
        a.vmem(f"buffer_load_dword v{vBIAS}, v18, {srd(SBS)}, s{sT2} offen", "bias")
        self.queue_stage(2)
        self.stamp("ln")
        z2 = self.zsteps(0, Z2R, 2)
        for k in range(4):
            def mk(r, k): return lambda b: sum((r(b)[2*q:2*q+2] + self.x_reads([4 * k + q]) for q in range(4)), [])
            z2[k].reads = mk(z2[k].reads, k); z2[k].il = 2
        z2[0].nd = 4; z2[1].nd = 4
        self.side.append(iter([z2[1]]))
        self.side.append(self.halo_ln(ACC)); self.side.append(self.z2_addr())
        z2[3].post = lambda: (self.issue_nonce(), self.side.append(self.z2_part(0)))
        for k in (1, 2, 3): z2[k].nv = cfg.nv_z0
        for k in (4, 5, 6, 7): z2[k].nv = cfg.nv_z2b
        z2[6].post = lambda: self.halo_write()
        q = self.qsteps(4, cfg.nv_q)
        z2[7].post = lambda: (self.stamp("z2"), self.side.append(self.z2_part(1)), self.side.append(self.z2_publish()),
                              self.side.append(self.z2_finish(q[cfg.g1], q[cfg.g2])))
        for k in range(cfg.fast_q): q[k].nv = cfg.nv_q0
        q[15].post = lambda: (self.stamp("qkv"), self.flush_v(), self.side.append(self.attn(Z2R, TT)))
        z1 = self.zsteps(12, Z1R, cfg.nv_z)
        z1[cfg.f2step].post = self.flag2
        def p2():
            self.poll_issue(f"s_lshl_b32 s{sC2}, s{sJ}, 3\ns_add_u32 s{sC2}, s{sC2}, s{sWv}\ns_lshl_b32 s{sC2}, s{sC2}, 7\n"
                            f"s_and_b32 s{sT2}, s{sM}, 1\ns_lshl_b32 s{sT2}, s{sT2}, 6\ns_add_u32 s{sC2}, s{sC2}, s{sT2}\ns_add_u32 s{sC2}, s{sC2}, {WS_F2}",
                            f"v_and_b32 v{vP+1}, 15, v{vLANE}\nv_lshlrev_b32 v{vP+1}, 2, v{vP+1}")
        z1[cfg.p2step].post = p2
        def pre_b():
            self.stamp("z1")
            self.flush_v()
            a(f"""
            s_lshl_b32 s{sZB}, s{sJ}, 19
            s_lshl_b32 s{sT2}, s{sWv}, 11
            s_add_u32 s{sZB}, s{sZB}, s{sT2}
            s_and_b32 s{sT2}, s{sM}, 1
            s_lshl_b32 s{sT2}, s{sT2}, 18
            s_add_u32 s{sZB}, s{sZB}, s{sT2}
            """)
            self.side.append(self.gelu([Z1R + k for k in range(16)], TT))
            self.flush_d()
            self.poll_check()
            self.stamp("poll2")
            self.q_zloads()
            self.pump_d(cfg.zpre)
        z1[7].post = pre_b
        b1 = self.bsteps(16, 0, 2, cfg.nd_b1)
        b1[2].post = lambda: self.flag_mjw(WS_F3, "o")
        b1[0].setup = self.addr_wsp
        b1[15].post = lambda: (self.stamp("B1"), self.flush_v(), self.side.append(self.part_send()))
        b2 = self.b2 = self.bsteps(20, 1, cfg.nv_b, 1)
        for k, v in enumerate(cfg.nd_b2): b2[k].nd = v
        for k, v in cfg.nd_b1x.items(): b1[k].nd = v
        self.run_steps(z2 + q + z1 + b1 + b2)
        self.stamp("B2")
        self.flush_v()
        self.e_b()
        self.tail(24, True)

    def prog_h(self):
        a = self.a
        self.stages = [("qkv", i) for i in range(8)] + [("wo", i) for i in range(2)] + [("wout", i) for i in range(4)]
        n = len(self.stages)
        self.slots = [((s + 2) % 4) * SLOT for s in range(n)]
        self.unlock = {1: (2, 3, 4)}
        for s in range(5, n): self.unlock[s - 3] = (s,)
        self.cur_stage = -1
        if cfg.hpf:
            a(f"""
            v_lshrrev_b32 v18, 4, v{vLANE}
            v_and_b32 v17, 15, v{vLANE}
            v_lshlrev_b32 v18, 12, v18
            v_lshl_add_u32 v18, v17, 7, v18
            s_lshr_b32 s{sT2}, s{sM}, 1
            s_lshl_b32 s{sT2}, s{sT2}, 19
            s_and_b32 s{sT3}, s{sM}, 1
            s_lshl_b32 s{sT1}, s{sT3}, 11
            s_add_u32 s{sT2}, s{sT2}, s{sT1}
            s_xor_b32 s{sT3}, s{sT3}, 1
            s_lshl_b32 s{sT3}, s{sT3}, 18
            s_add_u32 s{sT2}, s{sT2}, s{sT3}
            s_lshl_b32 s{sT3}, s{sWv}, 15
            s_add_u32 s{sT2}, s{sT2}, s{sT3}
            """)
            for k in range(4):
                a(f"s_xor_b32 s{sT3}, s{sT2}, {(k>>1)*(1<<18) + (k&1)*16384}")
                a.vmem(f"buffer_load_dword v{22+k}, v18, {srd(SWS)}, s{sT3} offen", "hpf")
            a(f"""
            s_lshl_b32 s{sT2}, s{sM}, 3
            s_add_u32 s{sT2}, s{sT2}, s{sWv}
            v_and_b32 v18, 31, v{vLANE}
            v_lshlrev_b32 v18, 7, v18
            s_lshl_b32 s{sT2}, s{sT2}, 12
            """)
            a.vmem(f"buffer_load_dword v26, v18, {srd(SWO)}, s{sT2} offen", "hpf")
            a.vmem(f"buffer_load_dword v27, v18, {srd(SWT)}, s{sT2} offen", "hpf")
        self.halo_loads()
        for s in range(2): self.queue_stage(s)
        self.layernorm_x()
        for _ in self.halo_ln(ACC): pass
        q = self.qsteps(0, 0)
        r0, r1 = q[0].reads, q[1].reads
        self.barrier()
        for r, _ in self.x_reads(range(16)): a.ds(r)
        self.halo_write()
        q[8].post = self.issue_nonce
        self.run_steps(q)
        self.side.append(self.attn(Z2R, TT))
        self.flush_v()
        self.get_nonce()
        self.flag_mjw(WS_F3, "o")
        self.pollm_issue(WS_F3)
        self.flush_d()
        self.poll_check()
        self.o_loads()
        self.final_x_loads()
        self.tail(8, False)

    def build(self):
        a = self.a
        a(f"{KN}:")
        self.record = True
        self.prologue()
        self.setup1()
        a(f"s_cmp_lg_u32 s{sRH}, 0\ns_cbranch_scc1 L_x1")
        a("s_waitcnt lgkmcnt(0)")
        vm = list(a.vm)
        self.x_loads()
        if cfg.touch: self.touch_z2()
        self.nonce_publish()
        a.vm = vm
        a("L_x1:")
        a("s_waitcnt lgkmcnt(0)")
        for b, o in ((SWQ, 8), (SWO, 16), (SWS, 40), (SBS, 48), (SWT, 56), (SOUT, 64), (SW, 80)):
            a(f"s_load_dwordx2 s[{b}:{b+1}], s[0:1], {o}")
        self.stamp("xi", True)
        self.setup2()
        self.ln_setup()
        a(f"s_cmp_eq_u32 s{sRH}, 0\ns_cbranch_scc1 L_x2")
        self.x_loads()
        a("L_x2:\ns_waitcnt lgkmcnt(0)")
        a(f"s_cmp_eq_u32 s{sJ}, 7\ns_cbranch_scc1 L_progh")
        vm0 = list(a.vm); nts0 = self.nts
        self.prog_z()
        a("L_exit:\ns_endpgm")
        a("L_progh:")
        a.vm = vm0; a.lg = []; self.nts = nts0; self.record = False
        assert not self.side and not self.dq
        self.prog_h()
        a("L_end:")
        body = a.finish()
        head = open("cdna_kernels/" + NAME + ".s.ref").read().split("; @launch")[0]
        txt = head + f"; @launch grid=(256,1,1) block=(512,1,1) lds={LDS_TOTAL}\n"
        txt += f'.amdgcn_target "amdgcn-amd-amdhsa--gfx950"\n.text\n.globl {KN}\n.p2align 8\n.type {KN},@function\n'
        txt += body
        txt += f""".section .rodata,"a"
.p2align 6
.amdhsa_kernel {KN}
  .amdhsa_next_free_vgpr 256
  .amdhsa_next_free_sgpr 102
  .amdhsa_accum_offset 256
  .amdhsa_group_segment_fixed_size 0
  .amdhsa_kernarg_size 88
  .amdhsa_user_sgpr_count 2
  .amdhsa_user_sgpr_kernarg_segment_ptr 1
  .amdhsa_system_sgpr_workgroup_id_x 1
.end_amdhsa_kernel
"""
        return txt

Cfg.rotX = 1; Cfg.touch = 1; Cfg.p2step = 6; Cfg.rotB = 0; Cfg.g1 = 8; Cfg.g2 = 10; Cfg.g5 = 8; Cfg.g7 = 11; Cfg.g8 = 14; Cfg.pubgap = 4
Cfg.pubbar = 0; Cfg.fast_q = 4; Cfg.nv_q0 = 4; Cfg.f2step = 3; Cfg.f4step = 2; Cfg.zpre = 4; Cfg.ln_d0 = 0; Cfg.ln_d1 = 4
Cfg.sleep = 1; Cfg.sleep_h = 1; Cfg.nd_q = (2, 2); Cfg.nd_b2 = [2]*16; Cfg.nd_b1x = {}; Cfg.nd_b1 = 1; Cfg.tstep = 1; Cfg.nv_z0 = 4; Cfg.nv_z2b = 3; Cfg.nv_q = 2; Cfg.nv_z = 2; Cfg.nv_b = 2

if __name__ == "__main__":
    out = sys.argv[1]
    for kv in sys.argv[2:]:
        k, v = kv.split("=")
        setattr(cfg, k, eval(v))
    g = Gen()
    txt = g.build()
    if cfg.ts: txt = txt.replace(".amdgcn_target", "; stamps: " + ",".join(g.names) + f"\n; map: {cfg.mapmode}\n; tsclk: {cfg.tsclk}\n.amdgcn_target", 1)
    open(out, "w").write(txt)
    print("written", out, "lines", txt.count("\n"), "auto nops", g.a.nnop)
```
